```python
import torch

def _softmax(x, axis=-1):
    return torch.softmax(x, dim=axis)
def _gelu(x):
    return torch.nn.functional.gelu(x, approximate="tanh")
def _silu(x):
    return torch.nn.functional.silu(x)
def _sigmoid(x):
    return torch.sigmoid(x)
def _layernorm(x, axis=-1, eps=1e-5):
    m = x.mean(dim=axis, keepdim=True)
    v = x.var(dim=axis, keepdim=True, unbiased=False)
    return (x - m) / torch.sqrt(v + eps)
def _scatter_add(tgt, idx, src, axis=0):
    return tgt.clone().index_add_(axis, idx, src)
def _segment_sum(src, seg, n):
    out = torch.zeros((n,) + src.shape[1:], dtype=src.dtype)
    return out.index_add_(0, seg, src)
def _pad(x, pw):
    flat = tuple(v for pair in reversed(pw) for v in pair)
    return torch.nn.functional.pad(x, flat)

kernel_name = 'parallel_sum__grouped_kv_mqa__mixer_token_mlp__prompt'

def setup_inputs():

    _w = (lambda a: (lambda t: t.to(torch.bfloat16) if t.is_floating_point() else t)(torch.as_tensor(a)))
    def _A_setup():
        B, S, D, H = 1, 2048, 640, 32
        Dh = D // H
        return {
            "x": _w((lambda *s: torch.randn(*s, dtype=torch.bfloat16) * 0.05)(B, S, D)),
            "wq": _w((lambda *s: torch.randn(*s, dtype=torch.bfloat16) * 0.05)(D, H * Dh)),
            "wk": _w((lambda *s: torch.randn(*s, dtype=torch.bfloat16) * 0.05)(D, Dh)),
            "wv": _w((lambda *s: torch.randn(*s, dtype=torch.bfloat16) * 0.05)(D, Dh)),
            "wo": _w((lambda *s: torch.randn(*s, dtype=torch.bfloat16) * 0.05)(H * Dh, D)),
        }
    _A_in = _A_setup()

    def _B_setup():
        B, S, D, F = 1, 2048, 640, 1536
        return {
            "x": _w((lambda *s: torch.randn(*s, dtype=torch.bfloat16) * 0.05)(B, S, D)),
            "w1": _w((lambda *s: torch.randn(*s, dtype=torch.bfloat16) * 1.6)(S, F) * (S ** -0.5)),
            "b1": _w((lambda *s: torch.randn(*s, dtype=torch.bfloat16) * 12.8)(F) * 0.02),
            "w2": _w((lambda *s: torch.randn(*s, dtype=torch.bfloat16) * 0.8)(F, S) * (F ** -0.5)),
            "b2": _w((lambda *s: torch.randn(*s, dtype=torch.bfloat16) * 12.8)(S) * 0.02),
        }
    _B_in = _B_setup()

    return {
        "A_x": _A_in["x"],
        "A_wq": _A_in["wq"],
        "A_wk": _A_in["wk"],
        "A_wv": _A_in["wv"],
        "A_wo": _A_in["wo"],
        "B_x": _B_in["x"],
        "B_w1": _B_in["w1"],
        "B_b1": _B_in["b1"],
        "B_w2": _B_in["w2"],
        "B_b2": _B_in["b2"],
    }

def reference(A_x, A_wq, A_wk, A_wv, A_wo, B_x, B_w1, B_b1, B_w2, B_b2):
    def _A_ref(x, wq, wk, wv, wo):
        B, S, D = x.shape
        H = 32
        Dh = D // H
        q = (lambda x, *d: x.permute(*d))((x @ wq).reshape(B, S, H, Dh), 0, 2, 1, 3)
        k = x @ wk
        v = x @ wv
        scores = torch.einsum("bhqd,bkd->bhqk", q, k) * (Dh ** -0.5)
        p = _softmax(scores, axis=-1)
        o = torch.einsum("bhqk,bkd->bhqd", p, v)
        return (lambda x, *d: x.permute(*d))(o, 0, 2, 1, 3).reshape(B, S, H * Dh) @ wo

    def _B_ref(x, w1, b1, w2, b2):
        B, S, D = x.shape
        h = _layernorm(x, axis=-1)
        u = torch.einsum("bsd,sf->bdf", h, w1) + b1
        u = _gelu(u)
        y = torch.einsum("bdf,fs->bds", u, w2) + b2
        return (lambda x, *d: x.permute(*d))(y, 0, 2, 1)

    x = A_x
    xn = _layernorm(x, axis=-1)
    return x + _A_ref(xn, A_wq, A_wk, A_wv, A_wo) + _B_ref(xn, B_w1, B_b1, B_w2, B_b2)
```

```python
from common import *
import common
PROFILE = common.PROFILE
EXP = common.EXP
import math, struct
def f2u(x): return struct.unpack("<I", struct.pack("<f", x))[0]
KVS0, KVS1 = 0, 32768
ST0, ST_STR = 24576, 18432
EXS = 79872; EXC = EXS + 512; EXF = EXC + 512
STG, SHG, SHEAD, STTA, STTB, STL = 35, 36, 37, 38, 39, 5
SONES = 6
SKC, SDST, SDEL, SSTG, ST1, ST2, ST3 = 60, 61, 62, 63, 64, 65, 66
SC, SKVD, SKVO, SPASS = 67, 68, 69, 70
SWN0, SWN1, SWN2 = 71, 72, 73
RX, RW, RKV, RO = R0, R1, R2, R3
VL, VH, VT = 1, 2, 3
Q1 = (80, 88); Q2 = (84, 86)
SB = (96, 112); OB = (128, 144); CB = (160, 176)
TB = 192; PB = 200
K1 = (208, 212); K2 = (216, 220); V1 = (224, 228); V2 = (232, 236)
KAC, KAN, K2C, K2N, VAC, VAN = 240, 241, 242, 243, 244, 245
VKVD, VOST = 246, 247

def kv_dma(a, sdst, soff):
    g = []
    g.append(["s_mul_i32 s%d, s%d, 6144" % (ST1, S_WAVE), "s_add_u32 m0, s%d, s%d" % (sdst, ST1), "s_add_u32 s%d, s%d, 4096" % (ST2, soff),
              "buffer_load_dwordx4 v%d, s[%d:%d], s%d offen lds" % (VKVD, RKV, RKV+3, soff)])
    for k in (1, 2, 3):
        g.append(["buffer_load_dwordx4 v%d, s[%d:%d], s%d offen offset:%d lds" % (VKVD, RKV, RKV+3, soff, 1024*k)])
    g.append(["s_add_u32 m0, m0, 4096", "s_nop 0", "buffer_load_dwordx4 v%d, s[%d:%d], s%d offen lds" % (VKVD, RKV, RKV+3, ST2)])
    g.append(["buffer_load_dwordx4 v%d, s[%d:%d], s%d offen offset:1024 lds" % (VKVD, RKV, RKV+3, ST2)])
    return g

def qproj_dma(a):
    a("s_lshl_b32 s%d, s%d, 7" % (ST1, ST3))
    a("s_lshl_b32 s%d, s%d, 10" % (ST2, S_WAVE))
    a("s_add_u32 s%d, s%d, s%d" % (ST2, ST2, SDST))
    a("s_mov_b32 m0, s%d" % ST2)
    a("s_nop 0")
    a("buffer_load_dwordx4 v4, s[%d:%d], s%d offen lds" % (RX, RX+3, ST1))
    a("s_add_u32 m0, s%d, 4096" % ST2)
    a("s_add_u32 s%d, s%d, 64" % (ST1, ST1))
    a("buffer_load_dwordx4 v4, s[%d:%d], s%d offen lds" % (RX, RX+3, ST1))
    a("s_mul_i32 s%d, s%d, 81920" % (ST1, ST3))
    for m, sn in enumerate((SWN0, SWN1, SWN2)):
        a("s_add_u32 m0, s%d, s%d" % (SDST, sn))
        a("s_nop 0")
        a("buffer_load_dwordx4 v%d, s[%d:%d], s%d offen lds" % (5+m, RW, RW+3, ST1))

def dq_of_mq(a, vl, dst, t1, t2):
    a("v_and_b32 v%d, 3, v%d" % (t1, vl))
    a("v_bfe_u32 v%d, v%d, 4, 1" % (t2, vl))
    a("v_lshl_add_u32 v%d, v%d, 2, v%d" % (t1, t2, t1))
    a("v_lshrrev_b32 v%d, 1, v%d" % (t2, t1))
    a("v_xor_b32 v%d, v%d, v%d" % (t2, t2, t1))
    a("v_and_b32 v%d, 1, v%d" % (t2, t2))
    a("v_mul_u32_u24 v%d, 3, v%d" % (t2, t2))
    a("v_xor_b32 v%d, v%d, v%d" % (t2, t2, t1))
    a("v_cmp_gt_u32 vcc, 4, v%d" % t1)
    a("v_mov_b32 v%d, 4" % dst)
    a("s_nop 0")
    a("v_cndmask_b32 v%d, v%d, v%d, vcc" % (dst, dst, t2))

def gen_qproj(a, hooks):
    a("; ---------- q projection ----------")
    srd(a, RX, P_X, S*D*2)
    srd(a, RW, P_WQ, D*D*2)
    a("v_lshrrev_b32 v20, 2, v%d" % VL)
    a("s_lshl_b32 s%d, s%d, 6" % (ST1, STG))
    a("s_lshl_b32 s%d, s%d, 4" % (ST2, S_WAVE))
    a("s_add_u32 s%d, s%d, s%d" % (ST1, ST1, ST2))
    a("v_add_u32 v20, s%d, v20" % ST1)
    a("s_movk_i32 s%d, 1280" % ST3)
    a("v_mul_lo_u32 v20, v20, s%d" % ST3)
    a("v_and_b32 v21, 3, v%d" % VL)
    a("v_bfe_u32 v22, v%d, 4, 2" % VL)
    a("v_xor_b32 v21, v21, v22")
    a("v_lshl_add_u32 v4, v21, 4, v20")
    a("s_add_u32 s%d, s%d, 4" % (SWN1, S_WAVE))
    a("s_add_u32 s%d, s%d, 8" % (SWN2, S_WAVE))
    a("s_cmp_lt_u32 s%d, 2" % S_WAVE)
    a("s_cselect_b32 s%d, s%d, s%d" % (SWN2, SWN2, SWN1))
    a("s_mov_b32 s%d, s%d" % (SWN0, S_WAVE))
    a("s_mul_i32 s%d, s%d, 160" % (ST2, SHG))
    for m, sn in enumerate((SWN0, SWN1, SWN2)):
        a("s_lshl_b32 s%d, s%d, 6" % (ST1, sn))
        a("v_add_u32 v20, s%d, v%d" % (ST1, VL))
        a("v_mul_u32_u24 v21, 6554, v20")
        a("v_lshrrev_b32 v21, 16, v21")
        a("v_mul_u32_u24 v22, 10, v21")
        a("v_sub_u32 v22, v20, v22")
        a("v_mul_lo_u32 v21, v21, s%d" % ST3)
        a("v_lshl_add_u32 v21, v22, 4, v21")
        a("v_add_u32 v%d, s%d, v21" % (5+m, ST2))
        a("s_lshl_b32 s%d, s%d, 10" % (sn, sn))
        a("s_add_u32 s%d, s%d, 8192" % (sn, sn))
    for kc in range(3):
        a("s_mov_b32 s%d, %d" % (ST3, kc))
        a("s_mov_b32 s%d, %d" % (SDST, ST0 + kc*ST_STR))
        qproj_dma(a)
    if "after_first_dma" in hooks: hooks["after_first_dma"](a)
    a("v_lshrrev_b32 v20, 4, v%d" % VT)
    a("s_lshl_b32 s%d, s%d, 1" % (ST1, STL))
    a("v_add_u32 v20, s%d, v20" % ST1)
    a("v_lshlrev_b32 v20, 10, v20")
    a("v_and_b32 v21, 15, v%d" % VT)
    a("v_lshl_add_u32 v20, v21, 6, v20")
    a("v_bfe_u32 v21, v%d, 2, 2" % VT)
    a("v_xor_b32 v21, v21, v%d" % VH)
    a("v_lshl_add_u32 v20, v21, 4, v20")
    a("v_add_u32 v8, %d, v20" % ST0)
    a("v_xor_b32 v9, 32, v8")
    a("s_cmp_eq_u32 s%d, 0" % STL)
    a("s_movk_i32 s%d, -2048" % ST2)
    a("s_cselect_b32 s%d, 2048, s%d" % (ST1, ST2))
    a("v_add_u32 v10, s%d, v8" % ST1)
    a("v_add_u32 v11, s%d, v9" % ST1)
    dq_of_mq(a, VL, 23, 21, 22)
    a("v_bfe_u32 v20, v%d, 2, 2" % VL)
    a("v_lshl_add_u32 v20, v%d, 3, v20" % VH)
    a("v_mul_u32_u24 v20, 160, v20")
    a("v_lshl_add_u32 v20, v23, 3, v20")
    a("s_mul_i32 s%d, s%d, 40" % (ST1, S_WAVE))
    a("s_add_u32 s%d, s%d, %d" % (ST1, ST1, ST0 + 8192))
    a("v_add_u32 v12, s%d, v20" % ST1)
    for r in range(13, 19): a("v_mov_b32 v%d, 0" % r)
    for r in range(48, 80): a("v_mov_b32 v%d, 0" % r)
    a("s_mov_b32 s%d, 0x3f803f80" % SONES)
    a("s_mov_b32 s%d, 0" % SKC)
    a("s_mov_b32 s%d, 0" % SSTG)
    LT, LW0, LB, LNI = a.uid("QP_top"), a.uid("QP_w0"), a.uid("QP_bar"), a.uid("QP_noissue")
    stamp(a, 2)
    a("s_waitcnt vmcnt(10)")
    stamp(a, 3)
    a("s_branch %s" % LB)
    a.label(LT)
    a("s_cmp_eq_u32 s%d, 9" % SKC)
    a("s_cbranch_scc1 %s" % LW0)
    a("s_waitcnt vmcnt(5)")
    a("s_branch %s" % LB)
    a.label(LW0)
    a("s_waitcnt vmcnt(0)")
    a.label(LB)
    a("s_barrier")
    a("s_sub_u32 s%d, s%d, 1" % (ST3, SKC))
    a("s_cmp_gt_u32 s%d, 6" % ST3)
    a("s_cbranch_scc1 %s" % LNI)
    a("s_add_u32 s%d, s%d, 2" % (ST3, SKC))
    qproj_dma(a)
    a.label(LNI)
    def reads(ks, b):
        seg, k1 = ks >> 1, ks & 1
        a("ds_read_b64_tr_b16 v[%d:%d], v12 offset:%d" % (b, b+1, ks*2560))
        a("ds_read_b64_tr_b16 v[%d:%d], v12 offset:%d" % (b+2, b+3, ks*2560+640))
        a("ds_read_b128 v[%d:%d], v%d offset:%d" % (b+4, b+7, 8+k1, seg*4096))
        a("ds_read_b128 v[%d:%d], v%d offset:%d" % (b+8, b+11, 10+k1, seg*4096))
    reads(0, 20)
    for ks in range(4):
        b = 20 + 12*(ks & 1)
        if ks < 3:
            reads(ks+1, 20 + 12*((ks+1) & 1))
            a("s_waitcnt lgkmcnt(4)")
        else:
            a("s_waitcnt lgkmcnt(0)")
        if not EXP.get("nomfma"): a(mfma(48, b, b+4, 48))
        for i in range(4):
            if EXP.get("nodot"): break
            a("v_dot2_f32_bf16 v%d, v%d, s%d, v%d" % (13+(i&1), b+4+i, SONES, 13+(i&1)))
            a("v_dot2_f32_bf16 v%d, v%d, v%d, v%d" % (15+(i&1), b+4+i, b+4+i, 15+(i&1)))
        if not EXP.get("nomfma"): a(mfma(64, b, b+8, 64))
        for i in range(4):
            if EXP.get("nodot"): break
            a("v_dot2_f32_bf16 v%d, v%d, s%d, v%d" % (17+(i&1), b+i, SONES, 17+(i&1)))
    a("s_mul_i32 s%d, s%d, %d" % (SDST, SSTG, ST_STR))
    a("s_add_u32 s%d, s%d, %d" % (SDST, SDST, ST0))
    a("s_add_u32 s%d, s%d, 1" % (SSTG, SSTG))
    a("s_cmp_eq_u32 s%d, 3" % SSTG)
    a("s_mov_b32 s%d, %d" % (SDEL, ST_STR))
    a("s_cselect_b32 s%d, %d, s%d" % (SDEL, -2*ST_STR, SDEL))
    a("s_cselect_b32 s%d, 0, s%d" % (SSTG, SSTG))
    for r in range(8, 13): a("v_add_u32 v%d, s%d, v%d" % (r, SDEL, r))
    a("s_add_u32 s%d, s%d, 1" % (SKC, SKC))
    a("s_cmp_lt_u32 s%d, 10" % SKC)
    a("s_cbranch_scc1 %s" % LT)
    stamp(a, 4)
    a.nop(4)
    a("v_add_f32 v13, v13, v14")
    a("v_add_f32 v15, v15, v16")
    a("v_add_f32 v17, v17, v18")
    half_sum(a, 13, 20, 21)
    half_sum(a, 15, 20, 21)
    half_sum(a, 17, 20, 21)
    a("v_mul_f32 v14, 0x3acccccd, v13")
    a("v_mul_f32 v15, 0x3acccccd, v15")
    a("v_fma_f32 v15, -v14, v14, v15")
    a("v_max_f32 v15, 0, v15")
    a("v_add_f32 v15, 0x3727c5ac, v15")
    a("v_rsq_f32 v15, v15")
    a("s_nop 0")
    a("v_mul_f32 v15, 0x%x, v15" % f2u(math.log2(math.e) / math.sqrt(20.0)))
    a("s_lshl_b32 s76, s%d, 8" % STL)
    a("s_add_u32 s76, s76, %d" % EXS)
    a("v_lshlrev_b32 v20, 3, v%d" % VT)
    a("v_add_u32 v21, s76, v20")
    a("ds_write_b64 v21, v[14:15]")
    a("s_lshl_b32 s77, s%d, 7" % S_WAVE)
    a("s_add_u32 s77, s77, %d" % EXC)
    a("v_lshlrev_b32 v22, 2, v%d" % VT)
    a("v_add_u32 v22, s77, v22")
    a("ds_write_b32 v22, v17")
    a("s_waitcnt lgkmcnt(0)")
    a("s_barrier")
    if "after_qproj_barrier" in hooks: hooks["after_qproj_barrier"](a)
    a("s_xor_b32 s76, s76, 256")
    a("v_add_u32 v21, s76, v20")
    a("ds_read_b64 v[18:19], v21")
    a("v_lshlrev_b32 v22, 4, v%d" % VH)
    a("v_add_u32 v22, s77, v22")
    for i in range(3):
        a("ds_read_b128 v[%d:%d], v22 offset:%d" % (24+4*i, 27+4*i, 32*i))
    a("s_waitcnt lgkmcnt(0)")
    for t, (dacc, mean, rc) in enumerate(((48, 14, 15), (64, 18, 19))):
        for r in range(12):
            a("v_fma_f32 v%d, -v%d, v%d, v%d" % (dacc+r, mean, 24+r, dacc+r))
        for r in range(12):
            a("v_mul_f32 v%d, v%d, v%d" % (dacc+r, rc, dacc+r))
        for i in range(4):
            a("v_cvt_pk_bf16_f32 v%d, v%d, v%d" % (Q1[t]+i, dacc+2*i, dacc+2*i+1))
        for i in range(2):
            a("v_cvt_pk_bf16_f32 v%d, v%d, v%d" % (Q2[t]+i, dacc+8+2*i, dacc+9+2*i))
    a("v_cmp_gt_u32 vcc, 32, v%d" % VL)
    a("s_nop 1")
    for t in range(2):
        for i in range(2):
            a("v_cndmask_b32 v%d, 0, v%d, vcc" % (Q2[t]+i, Q2[t]+i))

def kv_addr_init(a):
    a("v_lshlrev_b32 v%d, 4, v%d" % (KAC, VL))
    a("v_lshlrev_b32 v%d, 3, v%d" % (K2C, VT))
    a("v_add_u32 v%d, 8192, v%d" % (K2C, K2C))
    a("v_min_u32 v20, 20, v%d" % VT)
    a("v_cmp_lt_u32 vcc, 27, v%d" % VT)
    a("s_nop 1")
    a("v_cndmask_b32 v20, v20, 4, vcc")
    a("v_lshlrev_b32 v20, 4, v20")
    a("v_mul_u32_u24 v21, 384, v%d" % VH)
    a("v_add_u32 v20, v20, v21")
    a("v_add_u32 v%d, 10240, v20" % VAC)
    for c, n in ((KAC, KAN), (K2C, K2N), (VAC, VAN)):
        a("v_add_u32 v%d, %d, v%d" % (n, KVS1, c))
    a("s_mul_i32 s%d, s%d, 6144" % (ST1, S_WAVE))
    a("v_lshlrev_b32 v%d, 4, v%d" % (VKVD, VL))
    a("v_add_u32 v%d, s%d, v%d" % (VKVD, ST1, VKVD))

def k2reg(kt): return K2[(kt >> 1) & 1] + 2*(kt & 1)

def gen_main(a, hooks):
    a("; ---------- attention main ----------")
    LPASS = a.uid("AT_pass"); LLOOP = a.uid("AT_loop"); LNOD = a.uid("AT_nodma")
    a.label(LPASS)
    for r in list(range(OB[0], OB[0]+32)) + list(range(TB, TB+8)) + list(range(PB, PB+8)) + list(range(V2[1], V2[1]+4)):
        a("v_mov_b32 v%d, 0" % r)
    a("s_waitcnt vmcnt(6)")
    a("s_barrier")
    a("ds_read_b128 v[%d:%d], v%d" % (K1[0], K1[0]+3, KAC))
    a("ds_read2_b64 v[%d:%d], v%d offset0:0 offset1:32" % (K2[0], K2[0]+3, K2C))
    a("ds_read_b128 v[%d:%d], v%d" % (V1[0], V1[0]+3, VAC))
    a("ds_read_b128 v[%d:%d], v%d offset:768" % (V2[0], V2[0]+3, VAC))
    a("s_waitcnt lgkmcnt(2)")
    a(mfma(SB[0], K1[0], Q1[0], CB[0]))
    a(mfma8(SB[0], k2reg(0), Q2[0], SB[0]))
    a("s_mov_b32 s%d, 0" % SC)
    a("s_waitcnt lgkmcnt(0)")
    stamp(a, 5)
    a.nop(16)
    a.label(LLOOP)
    for n in range(16):
        kt, t = n >> 1, n & 1
        n1 = n + 1; kt1, t1 = n1 >> 1, n1 & 1
        tp = (n - 1) & 1; ktp = (n - 1) >> 1
        ms = [mfma(SB[t1], K1[kt1 & 1], Q1[t1], CB[t1]),
              mfma(OB[tp], V2[ktp & 1], PB+4, OB[tp]),
              mfma8(SB[t1], k2reg(kt1 & 7), Q2[t1], SB[t1]),
              mfma(OB[t], V1[kt & 1], PB, OB[t])]
        for q in range(4):
            a(ms[q])
            extra = []
            nk = kt + 1
            if t == 0 and q == 0:
                extra.append("ds_read_b128 v[%d:%d], v%d offset:%d" % (K1[nk&1], K1[nk&1]+3, KAC if nk < 8 else KAN, (nk & 7)*1024))
            if t == 0 and q == 2:
                extra.append("ds_read_b128 v[%d:%d], v%d offset:%d" % (V1[nk&1], V1[nk&1]+3, VAC if nk < 8 else VAN, (nk & 7)*1536))
            if t == 1 and q == 0:
                extra.append("ds_read_b128 v[%d:%d], v%d offset:%d" % (V2[nk&1], V2[nk&1]+3, VAC if nk < 8 else VAN, (nk & 7)*1536 + 768))
            if n == 13 and q == 1:
                extra += ["s_waitcnt vmcnt(0) lgkmcnt(0)", "s_barrier"]
            if t == 1 and q == 2 and kt % 2 == 0:
                pk = kt + 2
                b = K2[(pk >> 1) & 1]
                p = (pk & 7) >> 1
                extra.append("ds_read2_b64 v[%d:%d], v%d offset0:%d offset1:%d" % (b, b+3, K2C if pk < 8 else K2N, p*64, p*64+32))
            if q == 3:
                extra.append("s_waitcnt lgkmcnt(1)")
            for x in extra: a(x)
            if n == 13 and q == 1:
                a("s_cmp_gt_u32 s%d, 5" % SC)
                a("s_cbranch_scc1 %s" % LNOD)
                for g in kv_dma(a, SKVD, SKVO):
                    for x in g: a(x)
                a.label(LNOD)
                a("s_xor_b32 s%d, s%d, %d" % (SKVD, SKVD, KVS1))
                a("s_add_u32 s%d, s%d, %d" % (SKVO, SKVO, KV_CHUNK))
            Tc = TB + 4*(q & 1); Tp = TB + 4*((q+1) & 1)
            pd = PB + (2*q + 6) % 8
            es = ["v_exp_f32 v%d, v%d" % (Tc+e, SB[t]+4*q+e) for e in range(4)]
            cs = ["v_cvt_pk_bf16_f32 v%d, v%d, v%d" % (pd, Tp, Tp+1), "v_cvt_pk_bf16_f32 v%d, v%d, v%d" % (pd+1, Tp+2, Tp+3)]
            for x in (es[0], es[1], cs[0], cs[1], es[2], es[3]): a(x)
    for c, nn in ((KAC, KAN), (K2C, K2N), (VAC, VAN)):
        a("v_xor_b32 v%d, %d, v%d" % (c, KVS1, c))
        a("v_xor_b32 v%d, %d, v%d" % (nn, KVS1, nn))
    a("s_add_u32 s%d, s%d, 1" % (SC, SC))
    a("s_cmp_lt_u32 s%d, 8" % SC)
    a("s_cbranch_scc1 %s" % LLOOP)
    stamp(a, 6)
    a("v_cvt_pk_bf16_f32 v%d, v%d, v%d" % (PB+6, TB+4, TB+5))
    a("v_cvt_pk_bf16_f32 v%d, v%d, v%d" % (PB+7, TB+6, TB+7))
    a("s_nop 1")
    a(mfma(OB[1], V2[1], PB+4, OB[1]))
    a.nop(18)
    return LPASS

def gen_att(a, hooks=None):
    hooks = hooks or {}
    a("; ================= A-WG =================")
    stamp_init(a); stamp_rt(a, 0); stamp(a, 1)
    a("s_and_b32 s%d, s2, 7" % STG)
    a("s_lshr_b32 s%d, s2, 3" % ST1)
    a("s_and_b32 s%d, s%d, 7" % (SHG, ST1))
    a("s_lshr_b32 s%d, s%d, 3" % (ST1, ST1))
    a("s_lshl_b32 s%d, s%d, 3" % (ST1, ST1))
    a("s_add_u32 s%d, s%d, s%d" % (STG, STG, ST1))
    wave_lane(a, VL)
    a("v_lshrrev_b32 v%d, 5, v%d" % (VH, VL))
    a("v_and_b32 v%d, 31, v%d" % (VT, VL))
    a("s_nop 2")
    a("s_lshl_b32 s%d, s%d, 2" % (SHEAD, SHG))
    a("s_add_u32 s%d, s%d, s%d" % (SHEAD, SHEAD, S_WAVE))
    a("s_and_b32 s%d, s%d, 1" % (STL, S_WAVE))
    a("s_lshl_b32 s%d, s%d, 1" % (STTA, STG))
    a("s_add_u32 s%d, s%d, 1" % (STTB, STTA))
    a("s_sub_u32 s%d, s%d, s%d" % (STTB, STTB, STL))
    a("s_add_u32 s%d, s%d, s%d" % (STTA, STTA, STL))
    srd(a, RKV, P_WS, KV_SIZE, KV_OFF)
    kv_addr_init(a)
    if "kv_first" not in hooks:
        a("s_mov_b32 s%d, %d" % (SKVD, KVS0))
        a("s_mov_b32 s%d, 0" % SKVO)
        for g in kv_dma(a, SKVD, SKVO):
            for x in g: a(x)
    def after_q(a):
        if "kv_first" in hooks: hooks["kv_first"](a)
        a("s_mov_b32 s%d, %d" % (SKVD, KVS1))
        a("s_mov_b32 s%d, %d" % (SKVO, KV_CHUNK))
        for g in kv_dma(a, SKVD, SKVO):
            for x in g: a(x)
        a("s_mov_b32 s%d, %d" % (SKVD, KVS0))
        a("s_mov_b32 s%d, %d" % (SKVO, 2*KV_CHUNK))
    h2 = dict(hooks); h2["after_qproj_barrier"] = after_q
    gen_qproj(a, h2)
    for r in range(CB[0], CB[0]+32): a("v_mov_b32 v%d, 0" % r)
    a("s_mov_b32 s%d, 0" % SPASS)
    LPASS = gen_main(a, hooks)
    LOK = a.uid("AT_ok"); LMAXC = a.uid("AT_mc"); LMAXT = a.uid("AT_mt")
    for t in range(2):
        l = 20 + t
        a("v_mov_b32 v22, v%d" % (OB[t]+8))
        a("v_mov_b32 v%d, v%d" % (l, OB[t]+8))
        a("s_nop 1")
        a("v_permlane32_swap_b32 v22, v%d" % l)
    a("s_cmp_lg_u32 s%d, 0" % SPASS)
    a("s_cbranch_scc1 %s" % LOK)
    a("v_mov_b32 v22, 0")
    for t in range(2):
        for r in range(12):
            a("v_fma_f32 v22, v%d, 0, v22" % (OB[t]+r))
    a("v_min_f32 v23, v20, v21")
    a("v_max_f32 v24, v20, v21")
    a("v_add_f32 v24, v24, v22")
    a("v_cmp_nle_f32 vcc, 0x21800000, v23")
    a("s_mov_b32 s%d, 0x71800000" % ST1)
    a("v_cmp_nge_f32 s[74:75], s%d, v24" % ST1)
    a("s_nop 1")
    a("s_or_b64 vcc, vcc, s[74:75]")
    a("s_cmp_lg_u64 vcc, 0")
    a("s_cselect_b32 s%d, 1, 0" % ST1)
    a("v_mov_b32 v22, s%d" % ST1)
    a("s_lshl_b32 s%d, s%d, 2" % (ST2, S_WAVE))
    a("s_add_u32 s%d, s%d, %d" % (ST2, ST2, EXF))
    a("v_mov_b32 v23, s%d" % ST2)
    a("ds_write_b32 v23, v22")
    a("s_waitcnt lgkmcnt(0)")
    a("s_barrier")
    a("v_mov_b32 v23, %d" % EXF)
    a("ds_read_b128 v[24:27], v23")
    a("s_waitcnt lgkmcnt(0)")
    a("v_or_b32 v24, v24, v25")
    a("v_or3_b32 v24, v24, v26, v27")
    a("s_nop 0")
    a("v_readfirstlane_b32 s%d, v24" % ST1)
    a("s_nop 3")
    a("s_cmp_eq_u32 s%d, 0" % ST1)
    a("s_cbranch_scc1 %s" % LOK)
    a("v_mov_b32 v20, 0xff800000")
    a("v_mov_b32 v21, 0xff800000")
    a("s_mov_b32 s%d, 0" % SC)
    a.label(LMAXC)
    a("s_barrier")
    a("s_mov_b32 s%d, %d" % (SKVD, KVS0))
    a("s_mul_i32 s%d, s%d, %d" % (SKVO, SC, KV_CHUNK))
    for g in kv_dma(a, SKVD, SKVO):
        for x in g: a(x)
    a("s_waitcnt vmcnt(0)")
    a("s_barrier")
    a("v_mov_b32 v22, v%d" % KAC)
    a("v_mov_b32 v23, v%d" % K2C)
    a("s_mov_b32 s%d, 0" % SKC)
    a.label(LMAXT)
    a("ds_read_b128 v[%d:%d], v22" % (K1[0], K1[0]+3))
    a("ds_read_b64 v[%d:%d], v23" % (K2[0], K2[0]+1))
    a("s_waitcnt lgkmcnt(0)")
    for t in range(2):
        a(mfma(SB[t], K1[0], Q1[t], None))
        a(mfma8(SB[t], K2[0], Q2[t], SB[t]))
    a.nop(18)
    for t in range(2):
        for r in range(0, 16, 2):
            a("v_max3_f32 v%d, v%d, v%d, v%d" % (20+t, SB[t]+r, SB[t]+r+1, 20+t))
    a("v_add_u32 v22, 1024, v22")
    a("v_add_u32 v23, 256, v23")
    a("s_add_u32 s%d, s%d, 1" % (SKC, SKC))
    a("s_cmp_lt_u32 s%d, 8" % SKC)
    a("s_cbranch_scc1 %s" % LMAXT)
    a("s_add_u32 s%d, s%d, 1" % (SC, SC))
    a("s_cmp_lt_u32 s%d, 8" % SC)
    a("s_cbranch_scc1 %s" % LMAXC)
    for t in range(2):
        a("v_mov_b32 v22, v%d" % (20+t))
        a("v_mov_b32 v23, v%d" % (20+t))
        a("s_nop 1")
        a("v_permlane32_swap_b32 v22, v23")
        a("s_nop 1")
        a("v_max_f32 v22, v22, v23")
        a("v_sub_f32 v22, 0, v22")
        for r in range(16): a("v_mov_b32 v%d, v22" % (CB[t]+r))
    a("s_barrier")
    a("s_mov_b32 s%d, %d" % (SKVD, KVS0))
    a("s_mov_b32 s%d, 0" % SKVO)
    for g in kv_dma(a, SKVD, SKVO):
        for x in g: a(x)
    a("s_mov_b32 s%d, %d" % (SKVD, KVS1))
    a("s_mov_b32 s%d, %d" % (SKVO, KV_CHUNK))
    for g in kv_dma(a, SKVD, SKVO):
        for x in g: a(x)
    a("s_mov_b32 s%d, %d" % (SKVD, KVS0))
    a("s_mov_b32 s%d, %d" % (SKVO, 2*KV_CHUNK))
    a("s_mov_b32 s%d, 1" % SPASS)
    a("s_branch %s" % LPASS)
    a.label(LOK)
    srd(a, RO, P_WS, OQ_SIZE, OQ_OFF)
    a("v_lshlrev_b32 v%d, 3, v%d" % (VOST, VT))
    a("v_lshl_add_u32 v%d, v%d, 8, v%d" % (VOST, VH, VOST))
    st = hooks.get("st", "")
    for t in range(2):
        a("v_rcp_f32 v22, v%d" % (20+t))
        a("s_mul_i32 s%d, s%d, 160" % (ST1, STTA if t == 0 else STTB))
        a("s_mul_i32 s%d, s%d, 5" % (ST2, SHEAD))
        a("s_add_u32 s%d, s%d, s%d" % (ST1, ST1, ST2))
        a("s_lshl_b32 s%d, s%d, 8" % (ST1, ST1))
        for r in range(12):
            a("v_mul_f32 v%d, v22, v%d" % (OB[t]+r, OB[t]+r))
        b = 24 + 8*t
        for i in range(6):
            a("v_cvt_pk_bf16_f32 v%d, v%d, v%d" % (b+i, OB[t]+2*i, OB[t]+2*i+1))
        a("buffer_store_dwordx2 v[%d:%d], v%d, s[%d:%d], s%d offen%s" % (b, b+1, VOST, RO, RO+3, ST1, st))
        a("buffer_store_dwordx2 v[%d:%d], v%d, s[%d:%d], s%d offen offset:512%s" % (b+2, b+3, VOST, RO, RO+3, ST1, st))
        a("s_mov_b32 exec_hi, 0")
        a("buffer_store_dwordx2 v[%d:%d], v%d, s[%d:%d], s%d offen offset:1024%s" % (b+4, b+5, VOST, RO, RO+3, ST1, st))
        a("s_mov_b64 exec, -1")
    if "o_done" in hooks: hooks["o_done"](a)
    stamp(a, 7)
    a("s_waitcnt vmcnt(0)") if PROFILE else None
    stamp(a, 8); stamp_rt(a, 9)
    stamp_flush(a)
```

```python
from dsl import *
S, D, H, DH, F = 2048, 640, 32, 20, 1536
P_X, P_WQ, P_WK, P_WV, P_WO, P_BX, P_W1, P_B1 = 8, 10, 12, 14, 16, 18, 20, 22
P_W2, P_B2, P_OUT, P_DBG, P_WS = 24, 26, 28, 30, 32
FLAGS_OFF = 0
KV_OFF = 0x10000; KV_CHUNK = 22528; KV_SIZE = 8*KV_CHUNK
HF_OFF = 0x40000; HF_SIZE = 20*128*1024
UF_OFF = 0x2C0000; UF_SIZE = 20*96*1024
OQ_OFF = 0x4A0000; OQ_SIZE = 64*160*256
S_WG = 2
S_WAVE = 4
S_J = 34
R0, R1, R2, R3, R4 = 40, 44, 48, 52, 56

def load_kernargs(a):
    a("s_load_dwordx16 s[8:23], s[0:1], 0")
    a("s_load_dwordx8 s[24:31], s[0:1], 64")
    a("s_load_dwordx2 s[32:33], s[0:1], 96")

def wave_lane(a, vlane=1):
    a("v_lshrrev_b32 v%d, 6, v0" % vlane)
    a("s_nop 0")
    a("v_readfirstlane_b32 s%d, v%d" % (S_WAVE, vlane))
    a("v_and_b32 v%d, 63, v0" % vlane)

def dot2_ones_const(a, sreg):
    a("s_mov_b32 s%d, 0x3f803f80" % sreg)

def half_sum(a, x, t, u):
    a("v_mov_b32 v%d, v%d" % (t, x))
    a("v_mov_b32 v%d, v%d" % (u, x))
    a("s_nop 1")
    a("v_permlane32_swap_b32 v%d, v%d" % (t, u))
    a("s_nop 1")
    a("v_add_f32 v%d, v%d, v%d" % (x, t, u))

PROFILE = False
PROF_OFF = 0x800000
def stamp(a, idx):
    if not PROFILE: return
    a("s_memtime s[78:79]")
    a("s_waitcnt lgkmcnt(0)")
    a("s_mov_b32 s%d, s78" % (80+idx))
def stamp_rt(a, idx):
    if not PROFILE: return
    a("s_memrealtime s[78:79]")
    a("s_waitcnt lgkmcnt(0)")
    a("s_mov_b32 s%d, s78" % (80+idx))
def stamp_init(a):
    if not PROFILE: return
    for i in range(16): a("s_mov_b32 s%d, 0" % (80+i))
def stamp_flush(a):
    if not PROFILE: return
    a("s_add_u32 s76, s%d, 0x%x" % (P_WS, PROF_OFF))
    a("s_addc_u32 s77, s%d, 0" % (P_WS+1))
    a("v_lshrrev_b32 v4, 6, v0")
    a("s_lshl_b32 s78, s2, 2")
    a("v_add_u32 v4, s78, v4")
    a("v_lshlrev_b32 v4, 6, v4")
    for g in range(4):
        for i in range(4): a("v_mov_b32 v%d, s%d" % (8+i, 80+4*g+i))
        a("global_store_dwordx4 v4, v[8:11], s[76:77] offset:%d" % (16*g))
        a("s_nop 1")
    a("s_waitcnt vmcnt(0)")

import os as _os
EXP = dict((k, True) for k in _os.environ.get("EXP", "").split(",") if k)
```

```python
class Asm:
    def __init__(self):
        self.lines = []
        self._uid = 0
    def __call__(self, s):
        for l in s.split("\n"):
            l = l.strip()
            if l: self.lines.append("    " + l)
    def label(self, name):
        self.lines.append(name + ":")
    def raw(self, s):
        self.lines.append(s)
    def uid(self, base):
        self._uid += 1
        return "%s_%d" % (base, self._uid)
    def text(self):
        return "\n".join(self.lines) + "\n"
    def nop(self, n):
        while n > 0:
            k = min(n, 16)
            self("s_nop %d" % (k-1))
            n -= k

def v(n, cnt=1):
    return "v%d" % n if cnt == 1 else "v[%d:%d]" % (n, n+cnt-1)
def s(n, cnt=1):
    return "s%d" % n if cnt == 1 else "s[%d:%d]" % (n, n+cnt-1)

def srd(a, dst, ptr, nbytes, add=None):
    if add:
        a("s_add_u32 s%d, s%d, 0x%x" % (dst, ptr, add))
        a("s_addc_u32 s%d, s%d, 0" % (dst+1, ptr+1))
    else:
        a("s_mov_b32 s%d, s%d" % (dst, ptr))
        a("s_mov_b32 s%d, s%d" % (dst+1, ptr+1))
    a("s_mov_b32 s%d, 0x%x" % (dst+2, nbytes))
    a("s_mov_b32 s%d, 0x20000" % (dst+3))

def mfma(d, a_, b_, c):
    cs = "0" if c is None else v(c, 16)
    return "v_mfma_f32_32x32x16_bf16 %s, %s, %s, %s" % (v(d,16), v(a_,4), v(b_,4), cs)
def mfma8(d, a_, b_, c):
    cs = "0" if c is None else v(c, 16)
    return "v_mfma_f32_32x32x8bf16_1k %s, %s, %s, %s" % (v(d,16), v(a_,2), v(b_,2), cs)
```

```python
from common import *
M0_W = 0
M0_XN = 28672
M0_HT = M0_XN + 16*1296
XN_STR, HT_STR = 1296, 1344

def ln_inplace(a, X, sones, smask):
    for r in (28, 29, 30, 31): a("v_mov_b32 v%d, 0" % r)
    for i in range(20):
        a("v_dot2_f32_bf16 v%d, v%d, s%d, v%d" % (28+(i&1), X+i, sones, 28+(i&1)))
        a("v_dot2_f32_bf16 v%d, v%d, v%d, v%d" % (30+(i&1), X+i, X+i, 30+(i&1)))
    a.nop(3)
    a("v_add_f32 v28, v28, v29")
    a("v_add_f32 v30, v30, v31")
    for ror in (8, 4, 2, 1):
        a("s_nop 0")
        a("v_add_f32_dpp v28, v28, v28 row_ror:%d row_mask:0xf bank_mask:0xf" % ror)
        a("v_add_f32_dpp v30, v30, v30 row_ror:%d row_mask:0xf bank_mask:0xf" % ror)
    a("v_mul_f32 v28, 0x3acccccd, v28")
    a("v_mul_f32 v30, 0x3acccccd, v30")
    a("v_fma_f32 v30, -v28, v28, v30")
    a("v_max_f32 v30, 0, v30")
    a("v_add_f32 v30, 0x3727c5ac, v30")
    a("v_rsq_f32 v32, v30")
    a("s_nop 0")
    a("v_mul_f32 v34, -v28, v32")
    for i in range(20):
        t = 36 + 2*(i & 1)
        a("v_lshlrev_b32 v%d, 16, v%d" % (t, X+i))
        a("v_and_b32 v%d, s%d, v%d" % (t+1, smask, X+i))
        a("v_pk_fma_f32 v[%d:%d], v[%d:%d], v[32:33], v[34:35] op_sel_hi:[1,0,0]" % (t, t+1, t, t+1))
        a("v_cvt_pk_bf16_f32 v%d, v%d, v%d" % (X+i, t, t+1))

def gen_m0(a, done_label, hooks=None):
    hooks = hooks or {}
    SG, SJOB, SONES, SMASK = 35, 36, 37, 38
    a("; ================= M0 =================")
    a("s_and_b32 s%d, s%d, 7" % (SG, S_J))
    a("s_lshr_b32 s39, s%d, 4" % S_J)
    a("s_lshl_b32 s39, s39, 3")
    a("s_add_u32 s%d, s%d, s39" % (SG, SG))
    a("s_lshr_b32 s%d, s%d, 3" % (SJOB, S_J))
    a("s_and_b32 s%d, s%d, 1" % (SJOB, SJOB))
    wave_lane(a, 1)
    a("v_lshrrev_b32 v2, 4, v0")
    a("v_and_b32 v3, 15, v0")
    srd(a, R0, P_X, S*D*2)
    a("s_lshl_b32 s39, s%d, 4" % SG)
    a("v_add_u32 v4, s39, v2")
    a("s_movk_i32 s39, 1280")
    a("v_mul_lo_u32 v4, v4, s39")
    a("v_lshl_add_u32 v4, v3, 4, v4")
    for i in range(5):
        a("buffer_load_dwordx4 v[%d:%d], v4, s[%d:%d], 0 offen offset:%d" % (8+4*i, 11+4*i, R0, R0+3, 256*i))
    a("s_cmp_eq_u32 s%d, 0" % SJOB)
    a("s_cselect_b32 s%d, s%d, s%d" % (R1, P_WK, P_WV))
    a("s_cselect_b32 s%d, s%d, s%d" % (R1+1, P_WK+1, P_WV+1))
    a("s_mov_b32 s%d, %d" % (R1+2, 640*20*2))
    a("s_mov_b32 s%d, 0x20000" % (R1+3))
    a("s_mul_i32 s39, s%d, 7168" % S_WAVE)
    a("v_lshlrev_b32 v5, 4, v1")
    a("v_add_u32 v5, s39, v5")
    a("s_add_u32 m0, s39, %d" % M0_W)
    a("s_nop 0")
    for k in range(4):
        a("buffer_load_dwordx4 v5, s[%d:%d], 0 offen offset:%d lds" % (R1, R1+3, 1024*k))
    a("s_add_u32 m0, s39, %d" % (M0_W + 4096))
    a("s_movk_i32 s60, 4096")
    for k in range(3):
        a("buffer_load_dwordx4 v5, s[%d:%d], s60 offen offset:%d lds" % (R1, R1+3, 1024*k))
    a("s_mov_b32 s%d, 0x3f803f80" % SONES)
    a("s_mov_b32 s%d, 0xffff0000" % SMASK)
    a("v_mul_u32_u24 v40, %d, v2" % XN_STR)
    a("v_lshl_add_u32 v40, v3, 4, v40")
    a("v_add_u32 v40, %d, v40" % M0_XN)
    a("v_mul_u32_u24 v41, %d, v2" % HT_STR)
    a("v_lshl_add_u32 v41, v3, 4, v41")
    a("v_add_u32 v41, %d, v41" % M0_HT)
    a("s_waitcnt vmcnt(7)")
    ln_inplace(a, 8, SONES, SMASK)
    for i in range(5):
        a("ds_write_b128 v40, v[%d:%d] offset:%d" % (8+4*i, 11+4*i, 256*i))
    ln_inplace(a, 8, SONES, SMASK)
    for i in range(5):
        a("ds_write_b128 v41, v[%d:%d] offset:%d" % (8+4*i, 11+4*i, 256*i))
    a("s_waitcnt vmcnt(0) lgkmcnt(0)")
    a("s_barrier")
    LH = a.uid("M0_h"); LV = a.uid("M0_v"); LE = a.uid("M0_end")
    a("s_cmp_lg_u32 s%d, 0" % S_WAVE)
    a("s_cbranch_scc1 %s" % LH)
    a("v_lshrrev_b32 v2, 5, v1")
    a("v_and_b32 v3, 15, v1")
    a("v_mul_u32_u24 v6, %d, v3" % XN_STR)
    a("v_lshl_add_u32 v6, v2, 4, v6")
    a("v_add_u32 v6, %d, v6" % M0_XN)
    a("v_lshrrev_b32 v7, 2, v3")
    a("v_lshl_add_u32 v7, v2, 3, v7")
    a("v_mul_u32_u24 v7, 40, v7")
    a("v_and_b32 v42, 3, v1")
    a("v_bfe_u32 v43, v1, 4, 1")
    a("v_lshl_add_u32 v42, v43, 2, v42")
    a("v_min_u32 v43, 4, v42")
    a("v_lshrrev_b32 v44, 1, v42")
    a("v_xor_b32 v44, v44, v42")
    a("v_and_b32 v44, 1, v44")
    a("v_mul_u32_u24 v44, 3, v44")
    a("v_xor_b32 v44, v44, v42")
    a("v_cmp_gt_u32 vcc, 4, v42")
    a("s_nop 1")
    a("v_cndmask_b32 v44, v43, v44, vcc")
    a("s_cmp_eq_u32 s%d, 0" % SJOB)
    a("s_cselect_b64 vcc, -1, 0")
    a("s_nop 1")
    a("v_cndmask_b32 v44, v43, v44, vcc")
    a("v_lshl_add_u32 v7, v44, 3, v7")
    a("v_add_u32 v7, %d, v7" % M0_W)
    a("s_lshr_b32 s60, s%d, 1" % SG)
    a("s_and_b32 s61, s%d, 1" % SG)
    a("s_lshr_b32 s62, s60, 3")
    a("s_and_b32 s60, s60, 7")
    a("s_mul_i32 s62, s62, %d" % KV_CHUNK)
    srd(a, R2, P_WS, KV_SIZE, KV_OFF)
    def kvloop(isK):
        def reads(ks):
            b = 48 + 8*(ks & 3)
            a("ds_read_b128 v[%d:%d], v6 offset:%d" % (b, b+3, ks*32))
            a("ds_read_b64_tr_b16 v[%d:%d], v7 offset:%d" % (b+4, b+5, ks*640))
            a("ds_read_b64_tr_b16 v[%d:%d], v7 offset:%d" % (b+6, b+7, ks*640+160))
        for ks in range(4): reads(ks)
        for ks in range(40):
            b = 48 + 8*(ks & 3)
            rem = min(3, 39-ks)
            a("s_waitcnt lgkmcnt(%d)" % (3*rem))
            c = None if ks == 0 else 80
            if isK: a(mfma(80, b+4, b, c))
            else:   a(mfma(80, b, b+4, c))
            if ks+4 < 40: reads(ks+4)
        a.nop(16)
    a("s_cmp_lg_u32 s%d, 0" % SJOB)
    a("s_cbranch_scc1 %s" % LV)
    kvloop(True)
    for i in range(6):
        a("v_cvt_pk_bf16_f32 v%d, v%d, v%d" % (48+i, 80+2*i, 81+2*i))
    a("v_and_b32 v3, 31, v1")
    a("v_lshlrev_b32 v42, 4, v3")
    a("v_lshl_add_u32 v42, v2, 9, v42")
    a("s_lshl_b32 s63, s60, 10")
    a("s_add_u32 s63, s63, s62")
    a("s_lshl_b32 s64, s61, 8")
    a("s_add_u32 s63, s63, s64")
    a("s_mov_b32 s66, 0x0000ffff")
    a("s_mov_b32 s67, 0x0000ffff")
    a("s_mov_b64 exec, s[66:67]")
    a("buffer_store_dwordx4 v[48:51], v42, s[%d:%d], s63 offen%s" % (R2, R2+3, hooks.get("st", "")))
    a("v_lshlrev_b32 v42, 3, v3")
    a("s_lshl_b32 s63, s60, 8")
    a("s_add_u32 s63, s63, s62")
    a("s_lshl_b32 s64, s61, 7")
    a("s_add_u32 s63, s63, s64")
    a("s_add_u32 s63, s63, 8192")
    a("s_mov_b64 exec, 0xffff")
    a("buffer_store_dwordx2 v[52:53], v42, s[%d:%d], s63 offen%s" % (R2, R2+3, hooks.get("st", "")))
    a("s_mov_b64 exec, -1")
    if "kv_done" in hooks: hooks["kv_done"](a)
    a("s_branch %s" % LE)
    a.label(LV)
    kvloop(False)
    for i in range(4):
        a("v_cvt_pk_bf16_f32 v%d, v%d, v%d" % (48+i, 80+2*i, 81+2*i))
    a("v_and_b32 v3, 31, v1")
    a("v_cmp_eq_u32 vcc, 20, v3")
    a("v_mov_b32 v42, s%d" % SONES)
    a("s_nop 0")
    for i in range(4):
        a("v_cndmask_b32 v%d, v%d, v42, vcc" % (48+i, 48+i))
    a("v_lshlrev_b32 v42, 4, v3")
    a("v_mul_u32_u24 v43, 384, v2")
    a("v_add_u32 v42, v42, v43")
    a("s_lshl_b32 s63, s60, 1")
    a("s_add_u32 s63, s63, s61")
    a("s_mul_i32 s63, s63, 768")
    a("s_add_u32 s63, s63, s62")
    a("s_add_u32 s63, s63, 10240")
    a("s_mov_b32 s66, 0x001fffff")
    a("s_mov_b32 s67, 0x001fffff")
    a("s_mov_b64 exec, s[66:67]")
    a("buffer_store_dwordx4 v[48:51], v42, s[%d:%d], s63 offen%s" % (R2, R2+3, hooks.get("st", "")))
    a("s_mov_b64 exec, -1")
    if "kv_done" in hooks: hooks["kv_done"](a)
    a("s_branch %s" % LE)
    a.label(LH)
    a("v_lshrrev_b32 v2, 5, v1")
    a("v_and_b32 v3, 15, v1")
    a("v_lshrrev_b32 v7, 2, v3")
    a("v_lshl_add_u32 v7, v2, 3, v7")
    a("v_mul_u32_u24 v7, %d, v7" % HT_STR)
    a("v_and_b32 v42, 3, v1")
    a("v_bfe_u32 v43, v1, 4, 1")
    a("v_lshl_add_u32 v42, v43, 2, v42")
    a("v_lshl_add_u32 v7, v42, 3, v7")
    a("v_add_u32 v7, %d, v7" % M0_HT)
    srd(a, R2, P_WS, HF_SIZE, HF_OFF)
    a("v_lshlrev_b32 v6, 4, v1")
    a("s_mul_i32 s60, s%d, 10" % SJOB)
    a("s_sub_u32 s61, s%d, 1" % S_WAVE)
    LL = a.uid("M0_hl")
    a.label(LL)
    a("s_add_u32 s62, s60, s61")
    a("s_lshl_b32 s63, s62, 6")
    a("v_add_u32 v42, s63, v7")
    a("ds_read_b64_tr_b16 v[48:49], v42")
    a("ds_read_b64_tr_b16 v[50:51], v42 offset:%d" % (4*HT_STR))
    a("s_lshl_b32 s63, s62, 7")
    a("s_add_u32 s63, s63, s%d" % SG)
    a("s_lshl_b32 s63, s63, 10")
    a("s_waitcnt lgkmcnt(0)")
    a("buffer_store_dwordx4 v[48:51], v6, s[%d:%d], s63 offen%s" % (R2, R2+3, hooks.get("st", "")))
    a("s_add_u32 s61, s61, 3")
    a("s_cmp_lt_u32 s61, 10")
    a("s_nop 0")
    a("s_cbranch_scc1 %s" % LL)
    a.label(LE)
```

```python
from common import *
import common, math, struct
def f2u(x): return struct.unpack("<I", struct.pack("<f", x))[0]
RW1, RH, RB1, RU = R0, R1, R2, R3
SFT, SDT, ST1, ST2, SCH, SWOFF, SHOFF, SRING = 35, 36, 60, 61, 62, 63, 64, 65
ACC = 128
HB = 64
AF = 32
def acc(ft, dt): return ACC + 32*ft + 16*dt

def gen_m1(a, hooks=None):
    hooks = hooks or {}
    LEND = a.uid("M1_end")
    a("; ================= M1 =================")
    stamp(a, 4)
    a("s_and_b32 s%d, s%d, 7" % (ST1, S_J))
    a("s_lshr_b32 s%d, s%d, 3" % (ST2, S_J))
    a("s_cmp_ge_u32 s%d, 30" % ST2)
    a("s_cbranch_scc1 %s" % LEND)
    a("s_mul_hi_u32 s%d, s%d, 0x55555556" % (SDT, ST2))
    a("s_mul_i32 s%d, s%d, 3" % (SFT, SDT))
    a("s_sub_u32 s%d, s%d, s%d" % (SFT, ST2, SFT))
    a("s_mul_i32 s%d, s%d, 3" % (ST1, ST1))
    a("s_add_u32 s%d, s%d, s%d" % (SFT, SFT, ST1))
    wave_lane(a, 1)
    srd(a, RW1, P_W1, S*F*2)
    srd(a, RH, P_WS, HF_SIZE, HF_OFF)
    a("v_lshrrev_b32 v2, 3, v1")
    a("s_lshl_b32 s%d, s%d, 9" % (ST1, S_WAVE))
    a("v_add_u32 v2, s%d, v2" % ST1)
    a("s_movk_i32 s%d, 3072" % ST1)
    a("v_mul_lo_u32 v2, v2, s%d" % ST1)
    a("v_bfe_u32 v3, v1, 4, 1")
    a("v_lshlrev_b32 v3, 2, v3")
    a("v_and_b32 v4, 7, v1")
    a("v_xor_b32 v3, v3, v4")
    a("v_lshl_add_u32 v2, v3, 4, v2")
    a("s_lshl_b32 s%d, s%d, 7" % (ST1, SFT))
    a("v_add_u32 v2, s%d, v2" % ST1)
    a("s_lshl_b32 s%d, s%d, 8" % (ST1, SDT))
    a("s_lshl_b32 s%d, s%d, 5" % (ST2, S_WAVE))
    a("s_add_u32 s%d, s%d, s%d" % (ST1, ST1, ST2))
    a("s_lshl_b32 s%d, s%d, 10" % (ST1, ST1))
    a("v_lshlrev_b32 v3, 4, v1")
    a("v_add_u32 v3, s%d, v3" % ST1)
    a("v_add_u32 v4, 0x20000, v3")
    a("s_lshl_b32 s%d, s%d, 14" % (SRING, S_WAVE))
    a("v_lshrrev_b32 v8, 5, v1")
    a("v_bfe_u32 v9, v1, 2, 2")
    a("v_lshl_add_u32 v10, v8, 3, v9")
    a("v_lshlrev_b32 v10, 7, v10")
    a("v_bfe_u32 v11, v1, 4, 1")
    a("v_bfe_u32 v12, v1, 1, 1")
    a("v_lshl_add_u32 v11, v11, 1, v12")
    a("v_lshrrev_b32 v12, 1, v9")
    a("v_lshlrev_b32 v12, 2, v12")
    a("v_xor_b32 v11, v11, v12")
    a("v_lshl_add_u32 v10, v11, 4, v10")
    a("v_and_b32 v11, 1, v1")
    a("v_lshl_add_u32 v10, v11, 3, v10")
    a("v_add_u32 v5, s%d, v10" % SRING)
    a("v_xor_b32 v6, 64, v5")
    if "before_h" in hooks: hooks["before_h"](a)
    ld = hooks.get("ld", "")
    def issue(slot):
        for m in range(4):
            a("s_add_u32 m0, s%d, %d" % (SRING, slot*4096 + m*1024))
            a("s_add_u32 s%d, s%d, %d" % (ST1, SWOFF, m*8*3072))
            a("buffer_load_dwordx4 v2, s[%d:%d], s%d offen lds" % (RW1, RW1+3, ST1))
        for kk in range(2):
            for dt in range(2):
                b = HB + 16*slot + 8*kk + 4*dt
                a("buffer_load_dwordx4 v[%d:%d], v%d, s[%d:%d], s%d offen offset:%d%s" % (b, b+3, 3+dt, RH, RH+3, SHOFF, kk*1024, ld))
        a("s_add_u32 s%d, s%d, %d" % (SWOFF, SWOFF, 32*3072))
        a("s_add_u32 s%d, s%d, 2048" % (SHOFF, SHOFF))
    a("s_mov_b32 s%d, 0" % SWOFF)
    a("s_mov_b32 s%d, 0" % SHOFF)
    for sl in range(4): issue(sl)
    for r in range(ACC, ACC+64): a("v_mov_b32 v%d, 0" % r)
    a("s_mov_b32 s%d, 0" % SCH)
    LL = a.uid("M1_loop")
    def compute(slot):
        for kk in range(2):
            for ft in range(2):
                b = AF + 8*kk + 4*ft
                for rd in range(2):
                    a("ds_read_b64_tr_b16 v[%d:%d], v%d offset:%d" % (b+2*rd, b+2*rd+1, 5+ft, slot*4096 + kk*2048 + rd*512))
        for kk in range(2):
            a("s_waitcnt lgkmcnt(%d)" % (4 if kk == 0 else 0))
            for ft in range(2):
                for dt in range(2):
                    a(mfma(acc(ft, dt), AF + 8*kk + 4*ft, HB + 16*slot + 8*kk + 4*dt, acc(ft, dt)))
    a.label(LL)
    for sl in range(4):
        a("s_waitcnt vmcnt(24)")
        compute(sl)
        issue(sl)
    a("s_add_u32 s%d, s%d, 1" % (SCH, SCH))
    a("s_cmp_lt_u32 s%d, 3" % SCH)
    a("s_cbranch_scc1 %s" % LL)
    for sl in range(4):
        a("s_waitcnt vmcnt(%d)" % (8*(3-sl)))
        compute(sl)
    stamp(a, 5)
    srd(a, RB1, P_B1, F*2)
    a("s_lshr_b32 s%d, s%d, 1" % (ST1, S_WAVE))
    a("s_lshl_b32 s%d, s%d, 6" % (ST1, ST1))
    a("s_lshl_b32 s%d, s%d, 7" % (ST2, SFT))
    a("s_add_u32 s%d, s%d, s%d" % (ST1, ST1, ST2))
    a("v_lshlrev_b32 v9, 3, v8")
    for i in range(4):
        a("buffer_load_dwordx2 v[%d:%d], v9, s[%d:%d], s%d offen offset:%d" % (48+2*i, 49+2*i, RB1, RB1+3, ST1, 16*i))
    a.nop(12)
    a("s_barrier")
    a("v_lshlrev_b32 v10, 4, v1")
    a("s_lshl_b32 s%d, s%d, 12" % (ST1, S_WAVE))
    a("v_add_u32 v11, s%d, v10" % ST1)
    for t in range(4):
        for qd in range(4):
            b = ACC + 16*t + 4*qd
            a("ds_write_b128 v11, v[%d:%d] offset:%d" % (b, b+3, t*16384 + qd*1024))
    a("s_waitcnt lgkmcnt(0)")
    a("s_barrier")
    a("s_lshl_b32 s%d, s%d, 14" % (ST1, S_WAVE))
    a("v_add_u32 v11, s%d, v10" % ST1)
    for sw in range(4):
        for qd in range(4):
            b = 64 + 16*sw + 4*qd
            a("ds_read_b128 v[%d:%d], v11 offset:%d" % (b, b+3, sw*4096 + qd*1024))
    a("s_waitcnt vmcnt(0) lgkmcnt(0)")
    for r in range(16):
        a("v_add_f32 v%d, v%d, v%d" % (64+r, 64+r, 80+r))
        a("v_add_f32 v%d, v%d, v%d" % (96+r, 96+r, 112+r))
    for i in range(4):
        for p in range(2):
            a("v_lshlrev_b32 v%d, 16, v%d" % (80+4*i+2*p, 48+2*i+p))
            a("v_and_b32 v%d, 0xffff0000, v%d" % (80+4*i+2*p+1, 48+2*i+p))
    for r in range(16):
        a("v_add_f32 v%d, v%d, v%d" % (64+r, 64+r, 96+r))
    for r in range(16):
        a("v_add_f32 v%d, v%d, v%d" % (64+r, 64+r, 80+r))
    c0 = -2.0*math.sqrt(2.0/math.pi)*math.log2(math.e)
    c1 = c0*0.044715
    a("s_mov_b32 s%d, 0x%x" % (ST1, f2u(c0)))
    a("s_mov_b32 s%d, 0x%x" % (ST2, f2u(c1)))
    a("v_mov_b32 v12, s%d" % ST1)
    for r in range(16): a("v_mul_f32 v%d, v%d, v%d" % (80+r, 64+r, 64+r))
    for r in range(16): a("v_fma_f32 v%d, v%d, s%d, v12" % (80+r, 80+r, ST2))
    for r in range(16): a("v_mul_f32 v%d, v%d, v%d" % (80+r, 80+r, 64+r))
    for r in range(16): a("v_exp_f32 v%d, v%d" % (80+r, 80+r))
    for r in range(16): a("v_add_f32 v%d, 1.0, v%d" % (80+r, 80+r))
    for r in range(16): a("v_rcp_f32 v%d, v%d" % (80+r, 80+r))
    a("s_nop 0")
    for r in range(16): a("v_mul_f32 v%d, v%d, v%d" % (64+r, 64+r, 80+r))
    for i in range(8): a("v_cvt_pk_bf16_f32 v%d, v%d, v%d" % (96+i, 64+2*i, 65+2*i))
    srd(a, RU, P_WS, UF_SIZE, UF_OFF)
    a("s_and_b32 s%d, s%d, 1" % (ST1, S_WAVE))
    a("s_lshl_b32 s%d, s%d, 1" % (ST2, SDT))
    a("s_add_u32 s%d, s%d, s%d" % (ST1, ST1, ST2))
    a("s_mul_i32 s%d, s%d, 96" % (ST1, ST1))
    a("s_lshl_b32 s%d, s%d, 2" % (ST2, SFT))
    a("s_add_u32 s%d, s%d, s%d" % (ST1, ST1, ST2))
    a("s_and_b32 s%d, s%d, 2" % (ST2, S_WAVE))
    a("s_add_u32 s%d, s%d, s%d" % (ST1, ST1, ST2))
    a("s_lshl_b32 s%d, s%d, 10" % (ST1, ST1))
    st = hooks.get("st", "")
    a("buffer_store_dwordx4 v[96:99], v10, s[%d:%d], s%d offen%s" % (RU, RU+3, ST1, st))
    a("buffer_store_dwordx4 v[100:103], v10, s[%d:%d], s%d offen offset:1024%s" % (RU, RU+3, ST1, st))
    if "u_done" in hooks: hooks["u_done"](a)
    a.label(LEND)
    stamp(a, 6)
```

```python
from common import *
import common
RW2, RU, RWO, RO, RXO = R0, R1, R2, R3, R4
SSG, SDG, ST1, ST2, ST3, SCH, SWOFF, SUOFF, SRING = 35, 36, 60, 61, 62, 63, 64, 65, 66
ACC = 128
def acc(dt, st): return ACC + 32*dt + 16*st
UB = 32; FB = 112; OBF = 32
WREG = 20480

def gen_m2(a, hooks=None):
    hooks = hooks or {}
    LEND = a.uid("M2_end")
    a("; ================= M2 =================")
    stamp(a, 7)
    a("s_and_b32 s%d, s%d, 7" % (ST1, S_J))
    a("s_lshr_b32 s%d, s%d, 3" % (ST2, S_J))
    a("s_cmp_ge_u32 s%d, 28" % ST2)
    a("s_cbranch_scc1 %s" % LEND)
    a("s_mul_hi_u32 s%d, s%d, 0x24924925" % (ST3, ST2))
    a("s_mul_i32 s%d, s%d, 7" % (SDG, ST3))
    a("s_sub_u32 s%d, s%d, s%d" % (SDG, ST2, SDG))
    a("s_lshl_b32 s%d, s%d, 3" % (ST3, ST3))
    a("s_add_u32 s%d, s%d, s%d" % (SSG, ST1, ST3))
    wave_lane(a, 1)
    a("v_lshrrev_b32 v8, 5, v1")
    a("v_and_b32 v9, 31, v1")
    a("s_mul_i32 s%d, s%d, %d" % (SRING, S_WAVE, WREG))
    srd(a, RW2, P_W2, F*S*2)
    srd(a, RU, P_WS, UF_SIZE, UF_OFF)
    srd(a, RWO, P_WO, D*D*2)
    srd(a, RXO, P_X, S*D*2)
    a("s_lshl_b32 s%d, s%d, 6" % (ST1, SSG))
    a("v_add_u32 v16, s%d, v9" % ST1)
    a("v_lshlrev_b32 v30, 1, v16")
    a("s_movk_i32 s%d, 1280" % ST2)
    a("v_mul_lo_u32 v16, v16, s%d" % ST2)
    a("s_mul_i32 s%d, s%d, 192" % (ST1, SDG))
    a("s_lshl_b32 s%d, s%d, 4" % (ST2, S_WAVE))
    a("s_add_u32 s%d, s%d, s%d" % (ST1, ST1, ST2))
    a("v_lshl_add_u32 v16, v8, 3, v16")
    a("v_add_u32 v16, s%d, v16" % ST1)
    a("v_add_u32 v17, %d, v16" % (32*1280))
    for dt in range(3):
        for st in range(2):
            b = 18 + 4*dt + 2*st
            a("buffer_load_dwordx2 v[%d:%d], v%d, s[%d:%d], 0 offen offset:%d" % (b, b+1, 16+st, RXO, RXO+3, 64*dt))
    srd(a, RXO, P_B2, S*2)
    a("buffer_load_ushort v31, v30, s[%d:%d], 0 offen offset:64" % (RXO, RXO+3))
    a("buffer_load_ushort v30, v30, s[%d:%d], 0 offen" % (RXO, RXO+3))
    a("v_lshrrev_b32 v2, 3, v1")
    a("s_mul_i32 s%d, s%d, 384" % (ST1, S_WAVE))
    a("v_add_u32 v2, s%d, v2" % ST1)
    a("v_lshlrev_b32 v2, 12, v2")
    a("v_bfe_u32 v3, v1, 4, 1")
    a("v_lshlrev_b32 v3, 2, v3")
    a("v_and_b32 v4, 7, v1")
    a("v_xor_b32 v3, v3, v4")
    a("v_lshl_add_u32 v2, v3, 4, v2")
    a("s_lshl_b32 s%d, s%d, 7" % (ST1, SSG))
    a("v_add_u32 v2, s%d, v2" % ST1)
    a("s_lshl_b32 s%d, s%d, 3" % (ST1, S_WAVE))
    a("v_add_u32 v3, s%d, v9" % ST1)
    a("v_and_b32 v3, 31, v3")
    a("v_lshl_add_u32 v3, v8, 5, v3")
    a("v_lshlrev_b32 v10, 4, v3")
    a("s_mul_i32 s%d, s%d, 3" % (ST1, SDG))
    a("s_mul_i32 s%d, s%d, 24" % (ST2, S_WAVE))
    for dt in range(3):
        a("s_add_u32 s%d, s%d, %d" % (ST3, ST1, dt))
        a("s_min_u32 s%d, s%d, 19" % (ST3, ST3))
        a("s_mul_i32 s%d, s%d, 96" % (ST3, ST3))
        a("s_add_u32 s%d, s%d, s%d" % (ST3, ST3, ST2))
        a("s_lshl_b32 s%d, s%d, 10" % (ST3, ST3))
        a("v_add_u32 v%d, s%d, v10" % (3+dt, ST3))
    a("v_bfe_u32 v11, v1, 2, 2")
    a("v_lshl_add_u32 v10, v8, 2, v11")
    a("v_lshlrev_b32 v10, 7, v10")
    a("v_bfe_u32 v12, v1, 4, 1")
    a("v_bfe_u32 v13, v1, 1, 1")
    a("v_lshl_add_u32 v12, v12, 1, v13")
    a("v_lshrrev_b32 v13, 1, v11")
    a("v_lshlrev_b32 v13, 2, v13")
    a("v_xor_b32 v12, v12, v13")
    a("v_lshl_add_u32 v10, v12, 4, v10")
    a("v_and_b32 v12, 1, v1")
    a("v_lshl_add_u32 v10, v12, 3, v10")
    a("v_add_u32 v6, s%d, v10" % SRING)
    a("v_xor_b32 v7, 64, v6")
    a("v_lshl_add_u32 v10, v8, 3, v11")
    a("v_mul_u32_u24 v10, 192, v10")
    a("v_and_b32 v12, 3, v1")
    a("v_bfe_u32 v13, v1, 4, 1")
    a("v_lshl_add_u32 v12, v13, 2, v12")
    a("s_lshl_b32 s%d, s%d, 1" % (ST1, S_WAVE))
    a("v_add_u32 v12, s%d, v12" % ST1)
    a("v_and_b32 v12, 7, v12")
    a("v_lshl_add_u32 v10, v12, 3, v10")
    a("v_add_u32 v13, s%d, v10" % SRING)
    a("s_mul_i32 s%d, s%d, 160" % (ST1, S_WAVE))
    a("s_mul_i32 s%d, s%d, 192" % (ST2, SDG))
    a("s_movk_i32 s%d, 1280" % ST3)
    for m in range(3):
        a("v_add_u32 v112, %d, v1" % (64*m))
        a("v_mul_u32_u24 v113, 5462, v112")
        a("v_lshrrev_b32 v113, 16, v113")
        a("v_mul_u32_u24 v114, 12, v113")
        a("v_sub_u32 v114, v112, v114")
        a("v_add_u32 v113, s%d, v113" % ST1)
        a("v_mul_lo_u32 v113, v113, s%d" % ST3)
        a("v_lshl_add_u32 v113, v114, 4, v113")
        a("v_add_u32 v%d, s%d, v113" % (10+m, ST2))
    a("v_lshlrev_b32 v112, 6, v8")
    a("v_add_u32 v112, v112, v9")
    a("v_lshlrev_b32 v112, 3, v112")
    a("s_lshl_b32 s%d, s%d, 1" % (ST1, SSG))
    a("s_mul_i32 s%d, s%d, 160" % (ST1, ST1))
    a("s_mul_i32 s%d, s%d, 40" % (ST2, S_WAVE))
    a("s_add_u32 s%d, s%d, s%d" % (ST1, ST1, ST2))
    a("s_lshl_b32 s%d, s%d, 8" % (ST1, ST1))
    a("v_add_u32 v14, s%d, v112" % ST1)
    a("v_add_u32 v15, %d, v14" % (160*256))
    if "before_u" in hooks: hooks["before_u"](a)
    ld = hooks.get("ld", "")
    def issue(slot):
        for m in range(4):
            a("s_add_u32 m0, s%d, %d" % (SRING, slot*4096 + m*1024))
            a("s_add_u32 s%d, s%d, %d" % (ST1, SWOFF, m*8*4096))
            a("buffer_load_dwordx4 v2, s[%d:%d], s%d offen lds" % (RW2, RW2+3, ST1))
        for kk in range(2):
            for dt in range(3):
                b = UB + 24*slot + 12*kk + 4*dt
                a("buffer_load_dwordx4 v[%d:%d], v%d, s[%d:%d], s%d offen offset:%d%s" % (b, b+3, 3+dt, RU, RU+3, SUOFF, kk*1024, ld))
        a("s_add_u32 s%d, s%d, %d" % (SWOFF, SWOFF, 32*4096))
        a("s_add_u32 s%d, s%d, 2048" % (SUOFF, SUOFF))
    def compute(slot):
        for kk in range(2):
            for st in range(2):
                b = FB + 8*kk + 4*st
                for rd in range(2):
                    a("ds_read_b64_tr_b16 v[%d:%d], v%d offset:%d" % (b+2*rd, b+2*rd+1, 6+st, slot*4096 + kk*2048 + rd*1024))
        for kk in range(2):
            a("s_waitcnt lgkmcnt(%d)" % (4 if kk == 0 else 0))
            for dt in range(3):
                for st in range(2):
                    a(mfma(acc(dt, st), UB + 24*slot + 12*kk + 4*dt, FB + 8*kk + 4*st, acc(dt, st)))
    a("s_mov_b32 s%d, 0" % SWOFF)
    a("s_mov_b32 s%d, 0" % SUOFF)
    for sl in range(3): issue(sl)
    for r in range(ACC, ACC+96): a("v_mov_b32 v%d, 0" % r)
    a("s_mov_b32 s%d, 0" % SCH)
    LL = a.uid("M2_loop")
    a.label(LL)
    for sl in range(3):
        a("s_waitcnt vmcnt(20)")
        compute(sl)
        issue(sl)
    a("s_add_u32 s%d, s%d, 1" % (SCH, SCH))
    a("s_cmp_lt_u32 s%d, 3" % SCH)
    a("s_cbranch_scc1 %s" % LL)
    for sl in range(3):
        a("s_waitcnt vmcnt(%d)" % (10*(2-sl)))
        compute(sl)
    stamp(a, 8)
    def wo_issue(ks):
        slot = ks % 6
        a("s_mov_b32 s%d, %d" % (ST1, ks*16*1280))
        for m in range(3):
            a("s_add_u32 m0, s%d, %d" % (SRING, slot*3072 + m*1024))
            a("s_nop 0")
            a("buffer_load_dwordx4 v%d, s[%d:%d], s%d offen lds" % (10+m, RWO, RWO+3, ST1))
    for ks in range(6): wo_issue(ks)
    if "before_o" in hooks: hooks["before_o"](a)
    srd(a, RO, P_WS, OQ_SIZE, OQ_OFF)
    for ks in range(10):
        a("s_mov_b32 s%d, %d" % (ST1, ks*1024))
        for st in range(2):
            for m in range(2):
                b = OBF + 8*ks + 4*st + 2*m
                a("buffer_load_dwordx2 v[%d:%d], v%d, s[%d:%d], s%d offen offset:%d%s" % (b, b+1, 14+st, RO, RO+3, ST1, m*256, ld))
    for ks in range(10):
        slot = ks % 6
        if ks <= 5: a("s_waitcnt vmcnt(%d)" % (36 - 4*ks + 3*min(ks, 4)))
        else:       a("s_waitcnt vmcnt(%d)" % (3*(9-ks)))
        for dt in range(3):
            for rd in range(2):
                b = FB + 4*dt + 2*rd
                a("ds_read_b64_tr_b16 v[%d:%d], v13 offset:%d" % (b, b+1, slot*3072 + rd*768 + dt*64))
        for dt in range(3):
            a("s_waitcnt lgkmcnt(%d)" % (2*(2-dt)))
            for st in range(2):
                a(mfma(acc(dt, st), FB + 4*dt, OBF + 8*ks + 4*st, acc(dt, st)))
        if ks < 4: wo_issue(ks+6)
    stamp(a, 9)
    a.nop(12)
    a("s_barrier")
    a("v_lshlrev_b32 v2, 4, v1")
    for ip in range(1, 4):
        a("s_add_u32 s%d, s%d, %d" % (ST1, S_WAVE, ip))
        a("s_and_b32 s%d, s%d, 3" % (ST1, ST1))
        a("s_mul_i32 s%d, s%d, 18432" % (ST1, ST1))
        a("v_add_u32 v3, s%d, v2" % ST1)
        for t in range(6):
            b = ACC + 16*t + 4*ip
            a("ds_write_b128 v3, v[%d:%d] offset:%d" % (b, b+3, (ip-1)*6144 + t*1024))
    a("s_waitcnt lgkmcnt(0)")
    a("s_barrier")
    a("s_mul_i32 s%d, s%d, 18432" % (ST1, S_WAVE))
    a("v_add_u32 v3, s%d, v2" % ST1)
    for sl in range(3):
        for t in range(6):
            b = 32 + 24*sl + 4*t
            a("ds_read_b128 v[%d:%d], v3 offset:%d" % (b, b+3, sl*6144 + t*1024))
    a("v_lshlrev_b32 v30, 16, v30")
    a("v_lshlrev_b32 v31, 16, v31")
    srd(a, RXO, P_OUT, S*D*2)
    a("s_waitcnt lgkmcnt(0)")
    LSK = a.uid("M2_skip")
    for dt in range(3):
        if dt == 2:
            a("s_cmp_eq_u32 s%d, 6" % SDG)
            a("s_cbranch_scc1 %s" % LSK)
        for st in range(2):
            t = 2*dt + st
            c = ACC + 16*t
            xb = 18 + 4*dt + 2*st
            for j in range(4):
                a("v_add_f32 v%d, v%d, v%d" % (32+4*t+j, 32+4*t+j, 56+4*t+j))
                a("v_add_f32 v%d, v%d, v%d" % (c+j, c+j, 80+4*t+j))
            for j in range(4):
                a("v_add_f32 v%d, v%d, v%d" % (c+j, c+j, 32+4*t+j))
            a("v_lshlrev_b32 v112, 16, v%d" % xb)
            a("v_and_b32 v113, 0xffff0000, v%d" % xb)
            a("v_lshlrev_b32 v114, 16, v%d" % (xb+1))
            a("v_and_b32 v115, 0xffff0000, v%d" % (xb+1))
            for j in range(4):
                a("v_add_f32 v%d, v%d, v%d" % (112+j, 112+j, 30+st))
            for j in range(4):
                a("v_add_f32 v%d, v%d, v%d" % (c+j, c+j, 112+j))
            a("v_cvt_pk_bf16_f32 v%d, v%d, v%d" % (c+4, c, c+1))
            a("v_cvt_pk_bf16_f32 v%d, v%d, v%d" % (c+5, c+2, c+3))
            a("buffer_store_dwordx2 v[%d:%d], v%d, s[%d:%d], 0 offen offset:%d" % (c+4, c+5, 16+st, RXO, RXO+3, 64*dt))
    a.label(LSK)
    a.label(LEND)
    stamp(a, 10)
```

```python
import sys, os
import common
common.PROFILE = bool(os.environ.get("PROF"))
from common import *
import m0

KD = """.section .rodata,"a"
.p2align 6
.amdhsa_kernel {name}
  .amdhsa_next_free_vgpr {nv}
  .amdhsa_next_free_sgpr 102
  .amdhsa_accum_offset {nv}
  .amdhsa_group_segment_fixed_size 0
  .amdhsa_kernarg_size 104
  .amdhsa_user_sgpr_count 2
  .amdhsa_user_sgpr_kernarg_segment_ptr 1
  .amdhsa_system_sgpr_workgroup_id_x 1
.end_amdhsa_kernel
.text
"""
def kernel_head(a, name):
    a.raw(".globl %s" % name)
    a.raw(".p2align 8")
    a.raw(".type %s,@function" % name)
    a.label(name)

def build_split(parts):
    a = Asm()
    launches = []
    body = Asm()
    body._uid = 0
    if "k1" in parts:
        name = "mixa_k1_kernel"
        kernel_head(body, name)
        body("s_cmp_ge_u32 s2, 256")
        body("s_cbranch_scc1 %s_end" % name)
        load_kernargs(body)
        body("s_mov_b32 s%d, s2" % S_J)
        body("s_waitcnt lgkmcnt(0)")
        m0.gen_m0(body, name + "_end")
        body.label(name + "_end")
        body("s_endpgm")
        body.raw(KD.format(name=name, nv=128))
        launches.append((name, 256, 256, 81920))
    if "k2" in parts:
        import att, m1
        name = "mixa_k2_kernel"
        kernel_head(body, name)
        body("s_cmp_ge_u32 s2, 512")
        body("s_cbranch_scc1 %s_end" % name)
        load_kernargs(body)
        body("s_cmp_ge_u32 s2, 256")
        body("s_cbranch_scc1 %s_m" % name)
        body("s_waitcnt lgkmcnt(0)")
        att.gen_att(body)
        body("s_branch %s_end" % name)
        body.label(name + "_m")
        body("s_sub_u32 s%d, s2, 256" % S_J)
        body("s_waitcnt lgkmcnt(0)")
        m1.gen_m1(body)
        body.label(name + "_end")
        body("s_endpgm")
        body.raw(KD.format(name=name, nv=256))
        launches.append((name, 512, 256, 81920))
    if "k3" in parts:
        import m2
        name = "mixa_k3_kernel"
        kernel_head(body, name)
        body("s_cmp_ge_u32 s2, 256")
        body("s_cbranch_scc1 %s_end" % name)
        load_kernargs(body)
        body("s_mov_b32 s%d, s2" % S_J)
        body("s_waitcnt lgkmcnt(0)")
        m2.gen_m2(body)
        body.label(name + "_end")
        body("s_endpgm")
        body.raw(KD.format(name=name, nv=256))
        launches.append((name, 256, 256, 81920))
    return launches, body.text()

def header(launches):
    ref = open("parallel_sum__grouped_kv_mqa__mixer_token_mlp__prompt.s.ref").read().split("\n")
    out = []
    for l in ref:
        if l.startswith("; @launch"): break
        if l.startswith("; Override launch"): continue
        if l.startswith("; grid=ceil"): continue
        out.append(l)
    for (n, g, b, lds) in launches:
        out.append("; @launch kernel=%s grid=(%d,1,1) block=(%d,1,1) lds=%d" % (n, g, b, lds))
    out.append('.amdgcn_target "amdgcn-amd-amdhsa--gfx950"')
    out.append(".text")
    return "\n".join(out) + "\n"

if __name__ == "__main__":
    mode = sys.argv[1]
    outp = sys.argv[2]
    if mode.startswith("split"):
        parts = mode.split(":")[1].split(",") if ":" in mode else ["k1","k2","k3"]
        launches, text = build_split(parts)
    open(outp, "w").write(header(launches) + text)
    print(launches, len(text))
```

```python
from common import *
import common
PROFILE = common.PROFILE
EXP = common.EXP
import math, struct
import os as _os
def f2u(x): return struct.unpack("<I", struct.pack("<f", x))[0]
KVS0, KVS1 = 0, 32768
ST0, ST_STR = 0, 18432
EXS = 79872; EXC = EXS + 512; EXF = EXC + 512
STG, SHG, SHEAD, STTA, STTB, STL = 35, 36, 37, 38, 39, 5
SONES = 6
SKC, SDST, SDEL, SSTG, ST1, ST2, ST3 = 60, 61, 62, 63, 64, 65, 66
SC, SKVD, SKVO, SPASS = 67, 68, 69, 70
SWN0, SWN1, SWN2 = 71, 72, 73
SXO, SWO, SXD, SXW = 74, 75, 76, 77
SD2, SWO2 = 98, 99
QDUMMY = 77824
RX, RW, RKV, RO = R0, R1, R2, R3
VL, VH, VT = 1, 2, 3
Q1 = (80, 88); Q2 = (84, 86)
SB = (96, 112); OB = (128, 144); CB = (160, 176)
TB = 192; PB = 200
K1 = (208, 212); K2 = (216, 220); V1 = (224, 228); V2 = (232, 236)
KAC, KAN, K2C, K2N, VAC, VAN = 240, 241, 242, 243, 244, 245
VKVD, VOST = 246, 247

def kv_dma(a, sdst, soff, ld=''):
    g = []
    g.append(["s_mul_i32 s%d, s%d, 6144" % (ST1, S_WAVE), "s_add_u32 m0, s%d, s%d" % (sdst, ST1), "s_add_u32 s%d, s%d, 4096" % (ST2, soff),
              "buffer_load_dwordx4 v%d, s[%d:%d], s%d offen%s lds" % (VKVD, RKV, RKV+3, soff, ld)])
    for k in (1, 2, 3):
        g.append(["buffer_load_dwordx4 v%d, s[%d:%d], s%d offen offset:%d%s lds" % (VKVD, RKV, RKV+3, soff, 1024*k, ld)])
    g.append(["s_add_u32 m0, m0, 4096", "s_nop 0", "buffer_load_dwordx4 v%d, s[%d:%d], s%d offen%s lds" % (VKVD, RKV, RKV+3, ST2, ld)])
    g.append(["buffer_load_dwordx4 v%d, s[%d:%d], s%d offen offset:1024%s lds" % (VKVD, RKV, RKV+3, ST2, ld)])
    return g

def qproj_dma_prep(a):
    a("s_lshl_b32 s%d, s%d, 7" % (SXO, ST3))
    a("s_cmp_lt_u32 s%d, 10" % ST3)
    a("s_cselect_b32 s%d, s%d, 0x40000000" % (SXO, SXO))
    a("s_mul_i32 s%d, s%d, 81920" % (SWO, ST3))
    a("s_add_u32 s%d, s%d, s%d" % (SXD, SDST, SXW))
    a("s_cmp_lt_u32 s%d, 2" % S_WAVE)
    a("s_cselect_b32 s%d, s%d, 0" % (SD2, SDST))
    a("s_cselect_b32 s%d, s%d, 0x40000000" % (SWO2, SWO))
def qproj_dma_pieces():
    g = []
    g.append(["s_mov_b32 m0, s%d" % SXD, "s_add_u32 s%d, s%d, 64" % (ST1, SXO),
              "buffer_load_dwordx4 v4, s[%d:%d], s%d offen lds" % (RX, RX+3, SXO)])
    g.append(["s_add_u32 m0, s%d, 4096" % SXD, "s_nop 0",
              "buffer_load_dwordx4 v4, s[%d:%d], s%d offen lds" % (RX, RX+3, ST1)])
    for m, sn in enumerate((SWN0, SWN1, SWN2)):
        g.append(["s_add_u32 m0, s%d, s%d" % (SDST if m < 2 else SD2, sn), "s_nop 0",
                  "buffer_load_dwordx4 v%d, s[%d:%d], s%d offen lds" % (5+m, RW, RW+3, SWO if m < 2 else SWO2)])
    return g

def dq_of_mq(a, vl, dst, t1, t2):
    a("v_and_b32 v%d, 3, v%d" % (t1, vl))
    a("v_bfe_u32 v%d, v%d, 4, 1" % (t2, vl))
    a("v_lshl_add_u32 v%d, v%d, 2, v%d" % (t1, t2, t1))
    a("v_lshrrev_b32 v%d, 1, v%d" % (t2, t1))
    a("v_xor_b32 v%d, v%d, v%d" % (t2, t2, t1))
    a("v_and_b32 v%d, 1, v%d" % (t2, t2))
    a("v_mul_u32_u24 v%d, 3, v%d" % (t2, t2))
    a("v_xor_b32 v%d, v%d, v%d" % (t2, t2, t1))
    a("v_cmp_gt_u32 vcc, 4, v%d" % t1)
    a("v_mov_b32 v%d, 4" % dst)
    a("s_nop 0")
    a("v_cndmask_b32 v%d, v%d, v%d, vcc" % (dst, dst, t2))

def gen_qproj(a, hooks):
    a("; ---------- q projection ----------")
    a("v_lshrrev_b32 v20, 2, v%d" % VL)
    a("s_lshl_b32 s%d, s%d, 6" % (ST1, STG))
    a("s_lshl_b32 s%d, s%d, 4" % (ST2, S_WAVE))
    a("s_add_u32 s%d, s%d, s%d" % (ST1, ST1, ST2))
    a("v_add_u32 v20, s%d, v20" % ST1)
    a("s_movk_i32 s%d, 1280" % ST3)
    a("v_mul_lo_u32 v20, v20, s%d" % ST3)
    a("v_and_b32 v21, 3, v%d" % VL)
    a("v_bfe_u32 v22, v%d, 4, 2" % VL)
    a("v_xor_b32 v21, v21, v22")
    a("v_lshl_add_u32 v4, v21, 4, v20")
    a("s_add_u32 s%d, s%d, 4" % (SWN1, S_WAVE))
    a("s_add_u32 s%d, s%d, 8" % (SWN2, S_WAVE))
    a("s_cmp_lt_u32 s%d, 2" % S_WAVE)
    a("s_cselect_b32 s%d, s%d, s%d" % (SWN2, SWN2, SWN1))
    a("s_mov_b32 s%d, s%d" % (SWN0, S_WAVE))
    a("s_mul_i32 s%d, s%d, 160" % (ST2, SHG))
    for m, sn in enumerate((SWN0, SWN1, SWN2)):
        a("s_lshl_b32 s%d, s%d, 6" % (ST1, sn))
        a("v_add_u32 v20, s%d, v%d" % (ST1, VL))
        a("v_mul_u32_u24 v21, 6554, v20")
        a("v_lshrrev_b32 v21, 16, v21")
        a("v_mul_u32_u24 v22, 10, v21")
        a("v_sub_u32 v22, v20, v22")
        a("v_mul_lo_u32 v21, v21, s%d" % ST3)
        a("v_lshl_add_u32 v21, v22, 4, v21")
        a("v_add_u32 v%d, s%d, v21" % (5+m, ST2))
        a("s_lshl_b32 s%d, s%d, 10" % (sn, sn))
        a("s_add_u32 s%d, s%d, 8192" % (sn, sn))
        if m == 2:
            a("s_cmp_lt_u32 s%d, 2" % S_WAVE)
            a("s_cselect_b32 s%d, s%d, %d" % (sn, sn, QDUMMY))
    a("v_lshrrev_b32 v20, 4, v%d" % VT)
    a("s_lshl_b32 s%d, s%d, 1" % (ST1, STL))
    a("v_add_u32 v20, s%d, v20" % ST1)
    a("v_lshlrev_b32 v20, 10, v20")
    a("v_and_b32 v21, 15, v%d" % VT)
    a("v_lshl_add_u32 v20, v21, 6, v20")
    a("v_bfe_u32 v21, v%d, 2, 2" % VT)
    a("v_xor_b32 v21, v21, v%d" % VH)
    a("v_lshl_add_u32 v20, v21, 4, v20")
    a("v_add_u32 v8, %d, v20" % ST0)
    a("v_xor_b32 v9, 32, v8")
    a("s_cmp_eq_u32 s%d, 0" % STL)
    a("s_movk_i32 s%d, -2048" % ST2)
    a("s_cselect_b32 s%d, 2048, s%d" % (ST1, ST2))
    a("v_add_u32 v10, s%d, v8" % ST1)
    a("v_add_u32 v11, s%d, v9" % ST1)
    dq_of_mq(a, VL, 23, 21, 22)
    a("v_bfe_u32 v20, v%d, 2, 2" % VL)
    a("v_lshl_add_u32 v20, v%d, 3, v20" % VH)
    a("v_mul_u32_u24 v20, 160, v20")
    a("v_lshl_add_u32 v20, v23, 3, v20")
    a("s_mul_i32 s%d, s%d, 40" % (ST1, S_WAVE))
    a("s_add_u32 s%d, s%d, %d" % (ST1, ST1, ST0 + 8192))
    a("v_add_u32 v12, s%d, v20" % ST1)
    for r in range(16, 20): a("v_mov_b32 v%d, 0x3f803f80" % r)
    for r in list(range(48, 80)) + list(range(96, 112)): a("v_mov_b32 v%d, 0" % r)
    a("s_mov_b32 s%d, 0x3f803f80" % SONES)
    a("s_mov_b32 s%d, 0" % SKC)
    a("s_mov_b32 s%d, 0" % SSTG)
    kv_addr_init(a)
    for r in range(CB[0], CB[0]+32): a("v_mov_b32 v%d, 0" % r)
    a("s_waitcnt lgkmcnt(0)")
    stamp_init(a); stamp_rt(a, 0); stamp(a, 1)
    srd(a, RKV, P_WS, KV_SIZE, KV_OFF)
    srd(a, RX, P_X, S*D*2)
    srd(a, RW, P_WQ, D*D*2)
    a("s_lshl_b32 s%d, s%d, 10" % (SXW, S_WAVE))
    for kc in range(2):
        a("s_mov_b32 s%d, %d" % (ST3, kc))
        a("s_mov_b32 s%d, %d" % (SDST, ST0 + kc*ST_STR))
        qproj_dma_prep(a)
        for g in qproj_dma_pieces():
            for x in g: a(x)
    if not EXP.get("notouch"):
        a("s_lshr_b32 s%d, s2, 3" % ST1)
        a("s_mul_i32 s%d, s%d, 20" % (ST1, ST1))
        a("s_mul_i32 s%d, s%d, 5" % (ST2, S_WAVE))
        a("s_add_u32 s%d, s%d, s%d" % (ST1, ST1, ST2))
        a("v_mul_u32_u24 v20, 6554, v%d" % VL)
        a("v_lshrrev_b32 v20, 16, v20")
        a("v_mul_u32_u24 v21, 10, v20")
        a("v_sub_u32 v21, v%d, v21" % VL)
        a("v_lshlrev_b32 v21, 7, v21")
        a("v_add_u32 v22, s%d, v20" % ST1)
        a("v_mul_u32_u24 v22, 1280, v22")
        a("v_add_u32 v22, v22, v21")
        a("s_mov_b32 exec_hi, 0x3ffff")
        a("buffer_load_dword v255, v22, s[%d:%d], 0 offen" % (RW, RW+3))
        a("s_lshl_b32 s%d, s%d, 6" % (ST1, STG))
        a("s_lshl_b32 s%d, s%d, 3" % (ST2, SHG))
        a("s_add_u32 s%d, s%d, s%d" % (ST1, ST1, ST2))
        a("s_lshl_b32 s%d, s%d, 1" % (ST2, S_WAVE))
        a("s_add_u32 s%d, s%d, s%d" % (ST1, ST1, ST2))
        a("s_mov_b32 exec_hi, 0")
        a("s_mov_b32 exec_lo, 0xfffff")
        a("v_add_u32 v22, s%d, v20" % ST1)
        a("v_mul_u32_u24 v22, 1280, v22")
        a("v_add_u32 v22, v22, v21")
        a("buffer_load_dword v255, v22, s[%d:%d], 0 offen" % (RX, RX+3))
        a("s_mov_b64 exec, -1")
    FS = (20, 32, 208, 220)
    LT = a.uid("QP_top")
    stamp(a, 2)
    stamp(a, 3)
    ntouch = 0 if EXP.get("notouch") else 2
    def reads(ks, b):
        if EXP.get("qnoread"): return
        seg, k1 = ks >> 1, ks & 1
        a("ds_read_b64_tr_b16 v[%d:%d], v12 offset:%d" % (b, b+1, ks*2560))
        a("ds_read_b64_tr_b16 v[%d:%d], v12 offset:%d" % (b+2, b+3, ks*2560+640))
        a("ds_read_b128 v[%d:%d], v%d offset:%d" % (b+4, b+7, 8+k1, seg*4096))
        a("ds_read_b128 v[%d:%d], v%d offset:%d" % (b+8, b+11, 10+k1, seg*4096))
    a("s_waitcnt lgkmcnt(0)")
    stamp_init(a); stamp_rt(a, 0); stamp(a, 1)
    srd(a, RKV, P_WS, KV_SIZE, KV_OFF)
    srd(a, RX, P_X, S*D*2)
    srd(a, RW, P_WQ, D*D*2)
    a("s_lshl_b32 s%d, s%d, 10" % (SXW, S_WAVE))
    for kc in range(2):
        a("s_mov_b32 s%d, %d" % (ST3, kc))
        a("s_mov_b32 s%d, %d" % (SDST, ST0 + kc*ST_STR))
        qproj_dma_prep(a)
        for g in qproj_dma_pieces():
            for x in g: a(x)
    if not EXP.get("notouch"):
        a("s_lshr_b32 s%d, s2, 3" % ST1)
        a("s_mul_i32 s%d, s%d, 20" % (ST1, ST1))
        a("s_mul_i32 s%d, s%d, 5" % (ST2, S_WAVE))
        a("s_add_u32 s%d, s%d, s%d" % (ST1, ST1, ST2))
        a("v_mul_u32_u24 v20, 6554, v%d" % VL)
        a("v_lshrrev_b32 v20, 16, v20")
        a("v_mul_u32_u24 v21, 10, v20")
        a("v_sub_u32 v21, v%d, v21" % VL)
        a("v_lshlrev_b32 v21, 7, v21")
        a("v_add_u32 v22, s%d, v20" % ST1)
        a("v_mul_u32_u24 v22, 1280, v22")
        a("v_add_u32 v22, v22, v21")
        a("s_mov_b32 exec_hi, 0x3ffff")
        a("buffer_load_dword v255, v22, s[%d:%d], 0 offen" % (RW, RW+3))
        a("s_lshl_b32 s%d, s%d, 6" % (ST1, STG))
        a("s_lshl_b32 s%d, s%d, 3" % (ST2, SHG))
        a("s_add_u32 s%d, s%d, s%d" % (ST1, ST1, ST2))
        a("s_lshl_b32 s%d, s%d, 1" % (ST2, S_WAVE))
        a("s_add_u32 s%d, s%d, s%d" % (ST1, ST1, ST2))
        a("s_mov_b32 exec_hi, 0")
        a("s_mov_b32 exec_lo, 0xfffff")
        a("v_add_u32 v22, s%d, v20" % ST1)
        a("v_mul_u32_u24 v22, 1280, v22")
        a("v_add_u32 v22, v22, v21")
        a("buffer_load_dword v255, v22, s[%d:%d], 0 offen" % (RX, RX+3))
        a("s_mov_b64 exec, -1")
    FS = (20, 32, 208, 220)
    def q_iter():
        a("s_add_u32 s%d, s%d, 2" % (ST3, SKC))
        a("s_add_u32 s%d, s%d, 2" % (SDST, SSTG))
        a("s_and_b32 s%d, s%d, 3" % (SDST, SDST))
        a("s_mul_i32 s%d, s%d, %d" % (SDST, SDST, ST_STR))
        qproj_dma_prep(a)
        pieces = qproj_dma_pieces()
        if EXP.get("qnodma"): pieces = [[] for _ in pieces]
        for ks in range(4):
            b = FS[ks]
            if ks == 2:
                a("s_waitcnt vmcnt(5)")
                a("s_barrier")
                a("s_cmp_eq_u32 s%d, 3" % SSTG)
                a("s_mov_b32 s%d, %d" % (SDEL, ST_STR))
                a("s_cselect_b32 s%d, %d, s%d" % (SDEL, -3*ST_STR, SDEL))
                for r in range(8, 13): a("v_add_u32 v%d, s%d, v%d" % (r, SDEL, r))
                a("s_add_u32 s%d, s%d, 1" % (SSTG, SSTG))
                a("s_and_b32 s%d, s%d, 3" % (SSTG, SSTG))
                a("s_add_u32 s%d, s%d, 1" % (SKC, SKC))
            reads((ks+2) & 3, FS[(ks+2) & 3])
            a("s_waitcnt lgkmcnt(8)")
            pat = {0: [0, 1, None], 1: [2, 3, 4], 2: [None]*3, 3: [None]*3}[ks]
            ms = [mfma(48, b, b+4, 48), mfma(64, b, b+8, 64), mfma(96, b, 16, 96)]
            for i in range(3):
                if not EXP.get("qnomfma") and not (i == 2 and EXP.get("qnocs")): a(ms[i])
                if pat[i] is not None:
                    for x in pieces[pat[i]]: a(x)
    a("s_waitcnt vmcnt(%d)" % (5 + ntouch))
    a("s_barrier")
    reads(0, FS[0]); reads(1, FS[1])
    a.label(LT)
    q_iter(); q_iter()
    a("s_cmp_lt_u32 s%d, 10" % SKC)
    a("s_cbranch_scc1 %s" % LT)
    if "q_tail" in hooks: hooks["q_tail"](a)
    a("s_waitcnt vmcnt(0) lgkmcnt(0)")
    stamp(a, 4)
    a("s_barrier")
    if "after_qproj_barrier" in hooks: hooks["after_qproj_barrier"](a)
    a("s_waitcnt vmcnt(12)")
    c = f2u(math.log2(math.e) / math.sqrt(20.0))
    a("v_mul_f32 v15, 0x%x, v15" % c)
    a("v_mul_f32 v19, 0x%x, v19" % c)
    for t, (dacc, mean, rc) in enumerate(((48, 14, 15), (64, 18, 19))):
        for r in range(12):
            a("v_fma_f32 v%d, -v%d, v%d, v%d" % (dacc+r, mean, 96+r, dacc+r))
        for r in range(12):
            a("v_mul_f32 v%d, v%d, v%d" % (dacc+r, rc, dacc+r))
        for i in range(4):
            a("v_cvt_pk_bf16_f32 v%d, v%d, v%d" % (Q1[t]+i, dacc+2*i, dacc+2*i+1))
        for i in range(2):
            a("v_cvt_pk_bf16_f32 v%d, v%d, v%d" % (Q2[t]+i, dacc+8+2*i, dacc+9+2*i))
    a("v_cmp_gt_u32 vcc, 32, v%d" % VL)
    a("s_nop 1")
    for t in range(2):
        for i in range(2):
            a("v_cndmask_b32 v%d, 0, v%d, vcc" % (Q2[t]+i, Q2[t]+i))

def kv_addr_init(a):
    a("v_lshlrev_b32 v%d, 4, v%d" % (KAC, VL))
    a("v_lshlrev_b32 v%d, 3, v%d" % (K2C, VT))
    a("v_add_u32 v%d, 8192, v%d" % (K2C, K2C))
    a("v_min_u32 v20, 21, v%d" % VT)
    a("v_lshlrev_b32 v20, 4, v20")
    a("v_mul_u32_u24 v21, 384, v%d" % VH)
    a("v_add_u32 v20, v20, v21")
    a("v_add_u32 v%d, 10240, v20" % VAC)
    for c, n in ((KAC, KAN), (K2C, K2N), (VAC, VAN)):
        a("v_add_u32 v%d, %d, v%d" % (n, KVS1, c))
    a("s_mul_i32 s%d, s%d, 6144" % (ST1, S_WAVE))
    a("v_lshlrev_b32 v%d, 4, v%d" % (VKVD, VL))
    a("v_add_u32 v%d, s%d, v%d" % (VKVD, ST1, VKVD))

def k2reg(kt): return K2[(kt >> 1) & 1] + 2*(kt & 1)

def gen_main(a, hooks):
    a("; ---------- attention main ----------")
    LPASS = a.uid("AT_pass"); LLOOP = a.uid("AT_loop")
    a.label(LPASS)
    for r in list(range(OB[0], OB[0]+32)) + list(range(TB, TB+8)) + list(range(PB, PB+8)) + list(range(V2[1], V2[1]+4)):
        a("v_mov_b32 v%d, 0" % r)
    a("s_waitcnt vmcnt(6)")
    a("s_barrier")
    a("ds_read_b128 v[%d:%d], v%d" % (K1[0], K1[0]+3, KAC))
    a("ds_read2_b64 v[%d:%d], v%d offset0:0 offset1:32" % (K2[0], K2[0]+3, K2C))
    a("ds_read_b128 v[%d:%d], v%d" % (V1[0], V1[0]+3, VAC))
    a("ds_read_b128 v[%d:%d], v%d offset:768" % (V2[0], V2[0]+3, VAC))
    a("s_waitcnt lgkmcnt(2)")
    a(mfma(SB[0], K1[0], Q1[0], CB[0]))
    a(mfma8(SB[0], k2reg(0), Q2[0], SB[0]))
    a("s_mov_b32 s%d, 0" % SC)
    a("s_waitcnt lgkmcnt(0)")
    stamp(a, 5)
    a.nop(16)
    dmag = kv_dma(a, SKVD, SKVO, hooks.get('ld', ''))
    a.label(LLOOP)
    for n in range(16):
        kt, t = n >> 1, n & 1
        n1 = n + 1; kt1, t1 = n1 >> 1, n1 & 1
        tp = (n - 1) & 1; ktp = (n - 1) >> 1
        ms = [mfma(SB[t1], K1[kt1 & 1], Q1[t1], CB[t1]),
              mfma(OB[tp], V2[ktp & 1], PB+4, OB[tp]),
              mfma8(SB[t1], k2reg(kt1 & 7), Q2[t1], SB[t1]),
              mfma(OB[t], V1[kt & 1], PB, OB[t])]
        for q in range(4):
            a(ms[q])
            extra = []
            nk = kt + 1
            if t == 0 and q == 0:
                extra.append("ds_read_b128 v[%d:%d], v%d offset:%d" % (K1[nk&1], K1[nk&1]+3, KAC if nk < 8 else KAN, (nk & 7)*1024))
            if t == 0 and q == 2:
                extra.append("ds_read_b128 v[%d:%d], v%d offset:%d" % (V1[nk&1], V1[nk&1]+3, VAC if nk < 8 else VAN, (nk & 7)*1536))
            if t == 1 and q == 0:
                extra.append("ds_read_b128 v[%d:%d], v%d offset:%d" % (V2[nk&1], V2[nk&1]+3, VAC if nk < 8 else VAN, (nk & 7)*1536 + 768))
            k2pos = (t == 1 and q == 2 and kt % 2 == 0 and kt != 6) or (n == 14 and q == 1)
            if k2pos:
                pk = (kt + 2) if n != 14 else 8
                b = K2[(pk >> 1) & 1]
                p = (pk & 7) >> 1
                extra.append("ds_read2_b64 v[%d:%d], v%d offset0:%d offset1:%d" % (b, b+3, K2C if pk < 8 else K2N, p*64, p*64+32))
            if q == 3:
                if n == 13:
                    if PROFILE:
                        extra += ["s_memtime s[78:79]", "s_waitcnt lgkmcnt(0)", "s_mov_b32 s97, s78",
                                  "s_waitcnt vmcnt(0)", "s_memtime s[78:79]", "s_waitcnt lgkmcnt(0)", "s_sub_u32 s97, s78, s97", "s_add_u32 s91, s91, s97", "s_mov_b32 s97, s78",
                                  "s_barrier", "s_memtime s[78:79]", "s_waitcnt lgkmcnt(0)", "s_sub_u32 s97, s78, s97", "s_add_u32 s92, s92, s97"]
                    else:
                        extra += ["s_waitcnt vmcnt(0) lgkmcnt(0)", "s_barrier"]
                else: extra.append("s_waitcnt lgkmcnt(1)")
            di = (n - 14)*4 + q if n >= 14 else -1
            if 1 <= di <= 6 and di != 1 or (n == 14 and q == 0) or False:
                pass
            dma_at = {(14,0): 0, (14,2): 1, (14,3): 2, (15,1): 3, (15,2): 4, (15,3): 5}
            if (n, q) in dma_at:
                extra += dmag[dma_at[(n, q)]]
            if n == 15 and q == 3:
                extra += ["s_xor_b32 s%d, s%d, %d" % (SKVD, SKVD, KVS1), "s_add_u32 s%d, s%d, %d" % (SKVO, SKVO, KV_CHUNK)]
            for x in extra: a(x)
            Tc = TB + 4*(q & 1); Tp = TB + 4*((q+1) & 1)
            pd = PB + (2*q + 6) % 8
            es = ["v_exp_f32 v%d, v%d" % (Tc+e, SB[t]+4*q+e) for e in range(4)]
            cs = ["v_cvt_pk_bf16_f32 v%d, v%d, v%d" % (pd, Tp, Tp+1), "v_cvt_pk_bf16_f32 v%d, v%d, v%d" % (pd+1, Tp+2, Tp+3)]
            for x in (es[0], es[1], cs[0], cs[1], es[2], es[3]): a(x)
    for c, nn in ((KAC, KAN), (K2C, K2N), (VAC, VAN)):
        a("v_xor_b32 v%d, %d, v%d" % (c, KVS1, c))
        a("v_xor_b32 v%d, %d, v%d" % (nn, KVS1, nn))
    a("s_add_u32 s%d, s%d, 1" % (SC, SC))
    a("s_cmp_lt_u32 s%d, 8" % SC)
    a("s_cbranch_scc1 %s" % LLOOP)
    stamp(a, 6)
    a("v_cvt_pk_bf16_f32 v%d, v%d, v%d" % (PB+6, TB+4, TB+5))
    a("v_cvt_pk_bf16_f32 v%d, v%d, v%d" % (PB+7, TB+6, TB+7))
    a("s_nop 1")
    a(mfma(OB[1], V2[1], PB+4, OB[1]))
    a.nop(18)
    return LPASS

def gen_att(a, hooks=None):
    hooks = hooks or {}
    a("; ================= A-WG =================")
    a("s_setprio %d" % int(_os.environ.get("APRIO0", "3")))
    a("s_and_b32 s%d, s2, 7" % STG)
    a("s_lshr_b32 s%d, s2, 3" % ST1)
    a("s_and_b32 s%d, s%d, 7" % (SHG, ST1))
    a("s_lshr_b32 s%d, s%d, 3" % (ST1, ST1))
    a("s_lshl_b32 s%d, s%d, 3" % (ST1, ST1))
    a("s_add_u32 s%d, s%d, s%d" % (STG, STG, ST1))
    wave_lane(a, VL)
    a("v_lshrrev_b32 v%d, 5, v%d" % (VH, VL))
    a("v_and_b32 v%d, 31, v%d" % (VT, VL))
    a("s_nop 2")
    a("s_lshl_b32 s%d, s%d, 2" % (SHEAD, SHG))
    a("s_add_u32 s%d, s%d, s%d" % (SHEAD, SHEAD, S_WAVE))
    a("s_and_b32 s%d, s%d, 1" % (STL, S_WAVE))
    a("s_lshl_b32 s%d, s%d, 1" % (STTA, STG))
    a("s_add_u32 s%d, s%d, 1" % (STTB, STTA))
    a("s_sub_u32 s%d, s%d, s%d" % (STTB, STTB, STL))
    a("s_add_u32 s%d, s%d, s%d" % (STTA, STTA, STL))
    def after_q(a):
        if "wait_kv" in hooks: hooks["wait_kv"](a)
        ld = hooks.get("ld", "")
        srd(a, RO, P_WS, STAT_SIZE, STAT_OFF)
        a("v_lshlrev_b32 v20, 3, v%d" % VT)
        a("s_lshl_b32 s%d, s%d, 8" % (ST1, STTA))
        a("s_lshl_b32 s%d, s%d, 8" % (ST2, STTB))
        a("buffer_load_dwordx2 v[14:15], v20, s[%d:%d], s%d offen%s" % (RO, RO+3, ST1, ld))
        a("buffer_load_dwordx2 v[18:19], v20, s[%d:%d], s%d offen%s" % (RO, RO+3, ST2, ld))
        for (dst, off) in ((KVS0, 0), (KVS1, KV_CHUNK)):
            a("s_mov_b32 s%d, %d" % (SKVD, dst))
            a("s_mov_b32 s%d, %d" % (SKVO, off))
            for g in kv_dma(a, SKVD, SKVO, ld):
                for x in g: a(x)
        a("s_mov_b32 s%d, %d" % (SKVD, KVS0))
        a("s_mov_b32 s%d, %d" % (SKVO, 2*KV_CHUNK))
    h2 = dict(hooks); h2["after_qproj_barrier"] = after_q
    gen_qproj(a, h2)
    a("s_mov_b32 s%d, 0" % SPASS)
    a("s_setprio %d" % int(_os.environ.get("APRIO1", "0")))
    LPASS = gen_main(a, hooks)
    LOK = a.uid("AT_ok"); LMAXC = a.uid("AT_mc"); LMAXT = a.uid("AT_mt")
    for t in range(2):
        l = 20 + t
        a("v_mov_b32 v22, v%d" % (OB[t]+8))
        a("v_mov_b32 v%d, v%d" % (l, OB[t]+8))
        a("s_nop 1")
        a("v_permlane32_swap_b32 v22, v%d" % l)
    a("s_cmp_lg_u32 s%d, 0" % SPASS)
    a("s_cbranch_scc1 %s" % LOK)
    a("v_mov_b32 v22, 0")
    for t in range(2):
        for r in range(12):
            a("v_fma_f32 v22, v%d, 0, v22" % (OB[t]+r))
    a("v_min_f32 v23, v20, v21")
    a("v_max_f32 v24, v20, v21")
    a("v_add_f32 v24, v24, v22")
    a("v_cmp_nle_f32 vcc, 0x21800000, v23")
    a("s_mov_b32 s%d, 0x71800000" % ST1)
    a("v_cmp_nge_f32 s[74:75], s%d, v24" % ST1)
    a("s_nop 1")
    a("s_or_b64 vcc, vcc, s[74:75]")
    a("s_cmp_lg_u64 vcc, 0")
    a("s_cselect_b32 s%d, 1, 0" % ST1)
    a("v_mov_b32 v22, s%d" % ST1)
    a("s_lshl_b32 s%d, s%d, 2" % (ST2, S_WAVE))
    a("s_add_u32 s%d, s%d, %d" % (ST2, ST2, EXF))
    a("v_mov_b32 v23, s%d" % ST2)
    a("ds_write_b32 v23, v22")
    a("s_waitcnt lgkmcnt(0)")
    a("s_barrier")
    a("v_mov_b32 v23, %d" % EXF)
    a("ds_read_b128 v[24:27], v23")
    a("s_waitcnt lgkmcnt(0)")
    a("v_or_b32 v24, v24, v25")
    a("v_or3_b32 v24, v24, v26, v27")
    a("s_nop 0")
    a("v_readfirstlane_b32 s%d, v24" % ST1)
    a("s_nop 3")
    a("s_cmp_eq_u32 s%d, 0" % ST1)
    a("s_cbranch_scc1 %s" % LOK)
    a("v_mov_b32 v20, 0xff800000")
    a("v_mov_b32 v21, 0xff800000")
    a("s_mov_b32 s%d, 0" % SC)
    a.label(LMAXC)
    a("s_barrier")
    a("s_mov_b32 s%d, %d" % (SKVD, KVS0))
    a("s_mul_i32 s%d, s%d, %d" % (SKVO, SC, KV_CHUNK))
    for g in kv_dma(a, SKVD, SKVO, hooks.get('ld', '')):
        for x in g: a(x)
    a("s_waitcnt vmcnt(0)")
    a("s_barrier")
    a("v_mov_b32 v22, v%d" % KAC)
    a("v_mov_b32 v23, v%d" % K2C)
    a("s_mov_b32 s%d, 0" % SKC)
    a.label(LMAXT)
    a("ds_read_b128 v[%d:%d], v22" % (K1[0], K1[0]+3))
    a("ds_read_b64 v[%d:%d], v23" % (K2[0], K2[0]+1))
    a("s_waitcnt lgkmcnt(0)")
    for t in range(2):
        a(mfma(SB[t], K1[0], Q1[t], None))
        a(mfma8(SB[t], K2[0], Q2[t], SB[t]))
    a.nop(18)
    for t in range(2):
        for r in range(0, 16, 2):
            a("v_max3_f32 v%d, v%d, v%d, v%d" % (20+t, SB[t]+r, SB[t]+r+1, 20+t))
    a("v_add_u32 v22, 1024, v22")
    a("v_add_u32 v23, 256, v23")
    a("s_add_u32 s%d, s%d, 1" % (SKC, SKC))
    a("s_cmp_lt_u32 s%d, 8" % SKC)
    a("s_cbranch_scc1 %s" % LMAXT)
    a("s_add_u32 s%d, s%d, 1" % (SC, SC))
    a("s_cmp_lt_u32 s%d, 8" % SC)
    a("s_cbranch_scc1 %s" % LMAXC)
    for t in range(2):
        a("v_mov_b32 v22, v%d" % (20+t))
        a("v_mov_b32 v23, v%d" % (20+t))
        a("s_nop 1")
        a("v_permlane32_swap_b32 v22, v23")
        a("s_nop 1")
        a("v_max_f32 v22, v22, v23")
        a("v_sub_f32 v22, 0, v22")
        for r in range(16): a("v_mov_b32 v%d, v22" % (CB[t]+r))
    a("s_barrier")
    a("s_mov_b32 s%d, %d" % (SKVD, KVS0))
    a("s_mov_b32 s%d, 0" % SKVO)
    for g in kv_dma(a, SKVD, SKVO, hooks.get('ld', '')):
        for x in g: a(x)
    a("s_mov_b32 s%d, %d" % (SKVD, KVS1))
    a("s_mov_b32 s%d, %d" % (SKVO, KV_CHUNK))
    for g in kv_dma(a, SKVD, SKVO, hooks.get('ld', '')):
        for x in g: a(x)
    a("s_mov_b32 s%d, %d" % (SKVD, KVS0))
    a("s_mov_b32 s%d, %d" % (SKVO, 2*KV_CHUNK))
    a("s_mov_b32 s%d, 1" % SPASS)
    a("s_branch %s" % LPASS)
    a.label(LOK)
    srd(a, RO, P_WS, OQ_SIZE, OQ_OFF)
    a("v_lshlrev_b32 v%d, 3, v%d" % (VOST, VT))
    a("v_lshl_add_u32 v%d, v%d, 8, v%d" % (VOST, VH, VOST))
    st = hooks.get("st", "")
    for t in range(2):
        a("v_rcp_f32 v22, v%d" % (20+t))
        a("s_mul_i32 s%d, s%d, 160" % (ST1, STTA if t == 0 else STTB))
        a("s_mul_i32 s%d, s%d, 5" % (ST2, SHEAD))
        a("s_add_u32 s%d, s%d, s%d" % (ST1, ST1, ST2))
        a("s_lshl_b32 s%d, s%d, 8" % (ST1, ST1))
        for r in range(12):
            a("v_mul_f32 v%d, v22, v%d" % (OB[t]+r, OB[t]+r))
        b = 24 + 8*t
        for i in range(6):
            a("v_cvt_pk_bf16_f32 v%d, v%d, v%d" % (b+i, OB[t]+2*i, OB[t]+2*i+1))
        a("buffer_store_dwordx2 v[%d:%d], v%d, s[%d:%d], s%d offen%s" % (b, b+1, VOST, RO, RO+3, ST1, st))
        a("buffer_store_dwordx2 v[%d:%d], v%d, s[%d:%d], s%d offen offset:512%s" % (b+2, b+3, VOST, RO, RO+3, ST1, st))
        a("s_mov_b32 exec_hi, 0")
        a("buffer_store_dwordx2 v[%d:%d], v%d, s[%d:%d], s%d offen offset:1024%s" % (b+4, b+5, VOST, RO, RO+3, ST1, st))
        a("s_mov_b64 exec, -1")
    if "o_done" in hooks: hooks["o_done"](a)
    stamp(a, 7)
    a("s_waitcnt vmcnt(0)") if PROFILE else None
    stamp(a, 8); stamp_rt(a, 9)
    stamp_flush(a)
```

```python
from dsl import *
import os as _os
S, D, H, DH, F = 2048, 640, 32, 20, 1536
P_X, P_WQ, P_WK, P_WV, P_WO, P_BX, P_W1, P_B1 = 8, 10, 12, 14, 16, 18, 20, 22
P_W2, P_B2, P_OUT, P_DBG, P_WS = 24, 26, 28, 30, 32
FLAGS_OFF = 0
KV_OFF = 0x10000; KV_CHUNK = 22528; KV_SIZE = 8*KV_CHUNK
HF_OFF = 0x40000; HF_SIZE = 20*128*1024
UF_OFF = 0x2C0000; UF_SIZE = 20*96*1024
OQ_OFF = 0x4A0000; OQ_SIZE = 64*160*256
STAT_OFF = 0xC000; STAT_SIZE = 2048*8
FU_OFF = 0; FO_OFF = 10*256; P0_OFF = 42*256; PH_OFF = 106*256; NFLAG = 170; FLAG_BYTES = NFLAG*256
S_WG = 2
S_WAVE = 4
S_J = 34
R0, R1, R2, R3, R4 = 40, 44, 48, 52, 56

def load_kernargs(a):
    a("s_load_dwordx16 s[8:23], s[0:1], 0")
    a("s_load_dwordx8 s[24:31], s[0:1], 64")
    a("s_load_dwordx2 s[32:33], s[0:1], 96")

def wave_lane(a, vlane=1):
    a("v_lshrrev_b32 v%d, 6, v0" % vlane)
    a("s_nop 0")
    a("v_readfirstlane_b32 s%d, v%d" % (S_WAVE, vlane))
    a("v_and_b32 v%d, 63, v0" % vlane)

def dot2_ones_const(a, sreg):
    a("s_mov_b32 s%d, 0x3f803f80" % sreg)

def half_sum(a, x, t, u):
    a("v_mov_b32 v%d, v%d" % (t, x))
    a("v_mov_b32 v%d, v%d" % (u, x))
    a("s_nop 1")
    a("v_permlane32_swap_b32 v%d, v%d" % (t, u))
    a("s_nop 1")
    a("v_add_f32 v%d, v%d, v%d" % (x, t, u))

PROFILE = False
PROF_OFF = 0x800000
def stamp(a, idx):
    if not PROFILE: return
    a("s_memtime s[78:79]")
    a("s_waitcnt lgkmcnt(0)")
    a("s_mov_b32 s%d, s78" % (80+idx))
def stamp_rt(a, idx):
    if not PROFILE: return
    a("s_memrealtime s[78:79]")
    a("s_waitcnt lgkmcnt(0)")
    a("s_mov_b32 s%d, s78" % (80+idx))
def stamp_init(a):
    if not PROFILE: return
    for i in range(15): a("s_mov_b32 s%d, 0" % (80+i))
    a("s_mov_b32 s95, s96")
def stamp_flush(a):
    if not PROFILE: return
    a("s_add_u32 s76, s%d, 0x%x" % (P_WS, PROF_OFF))
    a("s_addc_u32 s77, s%d, 0" % (P_WS+1))
    a("v_lshrrev_b32 v4, 6, v0")
    a("s_lshl_b32 s78, s2, 2")
    a("v_add_u32 v4, s78, v4")
    a("v_lshlrev_b32 v4, 6, v4")
    for g in range(4):
        for i in range(4): a("v_mov_b32 v%d, s%d" % (8+i, 80+4*g+i))
        a("global_store_dwordx4 v4, v[8:11], s[76:77] offset:%d" % (16*g))
        a("s_nop 1")
    a("s_waitcnt vmcnt(0)")

import os as _os
EXP = dict((k, True) for k in _os.environ.get("EXP", "").split(",") if k)

SPIN_MAX = 1 << 16
def poll_loop(a, load_fn, check_fn, vtmp, pre=0, slp=None):
    L = a.uid("POLL"); E = a.uid("POLLE")
    a("s_cmp_lg_u32 s%d, 0" % S_WAVE)
    a("s_cbranch_scc1 %s" % E)
    a("s_mov_b32 s100, 0")
    while pre > 0:
        a("s_sleep %d" % min(pre, 127)); pre -= min(pre, 127)
    a.label(L)
    load_fn(a)
    a("s_waitcnt vmcnt(0)")
    check_fn(a)
    a("s_nop 1")
    a("s_cmp_eq_u64 vcc, 0")
    a("s_cbranch_scc1 %s" % E)
    a("s_sleep %d" % (slp if slp is not None else 2))
    a("s_add_u32 s100, s100, 1")
    a("s_cmp_lt_u32 s100, %d" % SPIN_MAX)
    a("s_cbranch_scc1 %s" % L)
    a.label(E)
    a("s_barrier")

def init_load(a, vdst):
    a("v_mov_b32 v%d, 0" % vdst)
    a("global_load_dword v%d, v%d, s[%d:%d] sc1" % (vdst, vdst, P_DBG, P_DBG+1))
def init_check(a, vdst):
    L = a.uid("INIT"); E = a.uid("INITE")
    a("s_mov_b32 s100, 0")
    a.label(L)
    a("v_cmp_eq_u32 vcc, 0, v%d" % vdst)
    a("s_nop 1")
    a("s_cmp_eq_u64 vcc, 0")
    a("s_cbranch_scc1 %s" % E)
    a("s_sleep 2")
    init_load(a, vdst)
    a("s_waitcnt vmcnt(0)")
    a("s_add_u32 s100, s100, 1")
    a("s_cmp_lt_u32 s100, %d" % SPIN_MAX)
    a("s_cbranch_scc1 %s" % L)
    a.label(E)
def wait_phase0(a, vt, off=None, pre=0, slp=None):
    a("s_add_u32 s76, s%d, %d" % (P_WS, P0_OFF if off is None else off))
    a("s_addc_u32 s77, s%d, 0" % (P_WS+1))
    a("v_and_b32 v%d, 63, v0" % vt)
    a("v_lshlrev_b32 v%d, 8, v%d" % (vt, vt))
    poll_loop(a, lambda a: a("global_load_dword v%d, v%d, s[76:77] sc1" % (vt+1, vt)),
              lambda a: a("v_cmp_ne_u32 vcc, 4, v%d" % (vt+1)), vt, pre, slp)

def arrive(a, ptr_pair, soff_reg, vt):
    a("v_mov_b32 v%d, s%d" % (vt, soff_reg))
    a("v_mov_b32 v%d, 1" % (vt+1))
    a("s_mov_b64 exec, 1")
    a("global_atomic_add v%d, v%d, s[%d:%d] sc1" % (vt, vt+1, ptr_pair, ptr_pair+1))
    a("s_mov_b64 exec, -1")
```

```python
from common import *
import os as _os
M0_W = 0
M0_XN = 28672
M0_HT = M0_XN + 16*1296
XN_STR, HT_STR = 1296, 1344
M0_ST = M0_HT + 16*1344
M0_PART = M0_ST + 128

def ln_stats(a, Y):
    a("v_pk_add_f32 v[28:29], v[%d:%d], v[%d:%d]" % (Y, Y+1, Y+2, Y+3))
    a("v_pk_mul_f32 v[30:31], v[%d:%d], v[%d:%d]" % (Y, Y+1, Y, Y+1))
    a("v_pk_fma_f32 v[30:31], v[%d:%d], v[%d:%d], v[30:31]" % (Y+2, Y+3, Y+2, Y+3))
    for i in range(2, 20):
        p = Y + 2*i
        a("v_pk_add_f32 v[28:29], v[28:29], v[%d:%d]" % (p, p+1))
        a("v_pk_fma_f32 v[30:31], v[%d:%d], v[%d:%d], v[30:31]" % (p, p+1, p, p+1))
    a("v_add_f32 v28, v28, v29")
    a("v_add_f32 v30, v30, v31")
    for ror in (8, 4, 2, 1):
        a("s_nop 0")
        a("v_add_f32_dpp v28, v28, v28 row_ror:%d row_mask:0xf bank_mask:0xf" % ror)
        a("v_add_f32_dpp v30, v30, v30 row_ror:%d row_mask:0xf bank_mask:0xf" % ror)
    a("v_mul_f32 v28, 0x3acccccd, v28")
    a("v_mul_f32 v30, 0x3acccccd, v30")
    a("v_fma_f32 v30, -v28, v28, v30")
    a("v_max_f32 v30, 0, v30")
    a("v_add_f32 v30, 0x3727c5ac, v30")
    a("v_rsq_f32 v32, v30")
    a("s_nop 0")
    a("v_mul_f32 v34, -v28, v32")
def ln_apply(a, Y, X):
    for i in range(20):
        p = Y + 2*i
        a("v_pk_fma_f32 v[%d:%d], v[%d:%d], v[32:33], v[34:35] op_sel_hi:[1,0,0]" % (p, p+1, p, p+1))
        if i > 0: a("v_cvt_pk_bf16_f32 v%d, v%d, v%d" % (X+i-1, p-2, p-1))
    a("v_cvt_pk_bf16_f32 v%d, v%d, v%d" % (X+19, Y+38, Y+39))

def gen_m0(a, done_label, hooks=None):
    hooks = hooks or {}
    SG, SJOB, SONES, SMASK = 35, 36, 37, 38
    a("; ================= M0 =================")
    a("s_and_b32 s%d, s%d, 7" % (SG, S_J))
    a("s_lshr_b32 s39, s%d, 4" % S_J)
    a("s_lshl_b32 s39, s39, 3")
    a("s_add_u32 s%d, s%d, s39" % (SG, SG))
    a("s_lshr_b32 s%d, s%d, 3" % (SJOB, S_J))
    a("s_and_b32 s%d, s%d, 1" % (SJOB, SJOB))
    wave_lane(a, 1)
    a("v_lshrrev_b32 v2, 4, v0")
    a("v_and_b32 v3, 15, v0")
    a("s_lshl_b32 s39, s%d, 4" % SG)
    a("v_add_u32 v4, s39, v2")
    a("s_movk_i32 s39, 1280")
    a("v_mul_lo_u32 v4, v4, s39")
    a("v_lshl_add_u32 v4, v3, 4, v4")
    a("s_mul_i32 s39, s%d, 7168" % S_WAVE)
    a("v_lshlrev_b32 v5, 4, v1")
    a("v_add_u32 v5, s39, v5")
    a("s_mov_b32 s%d, 0x3f803f80" % SONES)
    a("s_mov_b32 s%d, 0xffff0000" % SMASK)
    a("v_mul_u32_u24 v40, %d, v2" % XN_STR)
    a("v_lshl_add_u32 v40, v3, 4, v40")
    a("v_add_u32 v40, %d, v40" % M0_XN)
    a("v_mul_u32_u24 v41, %d, v2" % HT_STR)
    a("v_lshl_add_u32 v41, v3, 4, v41")
    a("v_add_u32 v41, %d, v41" % M0_HT)
    a("v_mov_b32 v45, v2")
    a("v_lshrrev_b32 v2, 5, v1")
    a("v_and_b32 v3, 15, v1")
    a("v_mul_u32_u24 v6, %d, v3" % XN_STR)
    a("v_lshl_add_u32 v6, v2, 4, v6")
    a("s_mul_i32 s60, s%d, 320" % S_WAVE)
    a("s_add_u32 s60, s60, %d" % M0_XN)
    a("v_add_u32 v6, s60, v6")
    a("v_lshrrev_b32 v7, 2, v3")
    a("v_lshl_add_u32 v7, v2, 3, v7")
    a("v_mul_u32_u24 v7, 40, v7")
    a("v_and_b32 v42, 3, v1")
    a("v_bfe_u32 v43, v1, 4, 1")
    a("v_lshl_add_u32 v42, v43, 2, v42")
    a("v_min_u32 v43, 4, v42")
    a("v_lshrrev_b32 v44, 1, v42")
    a("v_xor_b32 v44, v44, v42")
    a("v_and_b32 v44, 1, v44")
    a("v_mul_u32_u24 v44, 3, v44")
    a("v_xor_b32 v44, v44, v42")
    a("v_cmp_gt_u32 vcc, 4, v42")
    a("s_nop 1")
    a("v_cndmask_b32 v44, v43, v44, vcc")
    a("s_cmp_eq_u32 s%d, 0" % SJOB)
    a("s_cselect_b64 vcc, -1, 0")
    a("s_nop 1")
    a("v_cndmask_b32 v44, v43, v44, vcc")
    a("v_lshl_add_u32 v7, v44, 3, v7")
    a("s_mul_i32 s60, s%d, 6400" % S_WAVE)
    a("s_add_u32 s60, s60, %d" % M0_W)
    a("v_add_u32 v7, s60, v7")
    if "args" in hooks: hooks["args"](a)
    srd(a, R0, P_X, S*D*2)
    for i in range(5):
        a("buffer_load_dwordx4 v[%d:%d], v4, s[%d:%d], 0 offen offset:%d" % (8+4*i, 11+4*i, R0, R0+3, 256*i))
    a("s_cmp_eq_u32 s%d, 0" % SJOB)
    a("s_cselect_b32 s%d, s%d, s%d" % (R1, P_WK, P_WV))
    a("s_cselect_b32 s%d, s%d, s%d" % (R1+1, P_WK+1, P_WV+1))
    a("s_mov_b32 s%d, %d" % (R1+2, 640*20*2))
    a("s_mov_b32 s%d, 0x20000" % (R1+3))
    a("s_add_u32 m0, s39, %d" % M0_W)
    a("s_nop 0")
    for k in range(4):
        a("buffer_load_dwordx4 v5, s[%d:%d], 0 offen offset:%d lds" % (R1, R1+3, 1024*k))
    a("s_add_u32 m0, s39, %d" % (M0_W + 4096))
    a("s_movk_i32 s60, 4096")
    for k in range(3):
        a("buffer_load_dwordx4 v5, s[%d:%d], s60 offen offset:%d lds" % (R1, R1+3, 1024*k))
    a("s_setprio %d" % int(_os.environ.get("M0PRIO", "2")))
    a("s_waitcnt vmcnt(7)")
    if "after_x" in hooks: hooks["after_x"](a)
    Y = 48
    for i in range(20):
        a("v_lshlrev_b32 v%d, 16, v%d" % (Y+2*i, 8+i))
        a("v_and_b32 v%d, s%d, v%d" % (Y+2*i+1, SMASK, 8+i))
    ln_stats(a, Y)
    a("v_mov_b32 v36, v28")
    a("v_mov_b32 v37, v32")
    a("v_lshlrev_b32 v42, 3, v45")
    a("v_add_u32 v42, %d, v42" % M0_ST)
    a("ds_write_b64 v42, v[36:37]")
    ln_apply(a, Y, 8)
    for i in range(5):
        a("ds_write_b128 v40, v[%d:%d] offset:%d" % (8+4*i, 11+4*i, 256*i))
    a("s_waitcnt vmcnt(0) lgkmcnt(0)")
    a("s_barrier")
    stamp(a, 4)
    def reads(ks):
        b = 96 + 8*(ks % 5)
        a("ds_read_b128 v[%d:%d], v6 offset:%d" % (b, b+3, ks*32))
        a("ds_read_b64_tr_b16 v[%d:%d], v7 offset:%d" % (b+4, b+5, ks*640))
        a("ds_read_b64_tr_b16 v[%d:%d], v7 offset:%d" % (b+6, b+7, ks*640+160))
    LVJ, LVE = a.uid("M0_vj"), a.uid("M0_vje")
    for ks in range(5): reads(ks)
    a("s_cmp_lg_u32 s%d, 0" % SJOB)
    a("s_cbranch_scc1 %s" % LVJ)
    for isK in (True, False):
        for ks in range(10):
            b = 96 + 8*(ks % 5)
            rem = min(4, 9-ks)
            a("s_waitcnt lgkmcnt(%d)" % (3*rem))
            c = None if ks == 0 else 144
            a(mfma(144, b+4, b, c) if isK else mfma(144, b, b+4, c))
            if ks+5 < 10: reads(ks+5)
        if isK:
            a("s_branch %s" % LVE)
            a.label(LVJ)
    a.label(LVE)
    ln_stats(a, Y)
    a("v_lshlrev_b32 v42, 4, v1")
    a("s_mul_i32 s60, s%d, 3072" % S_WAVE)
    a("s_add_u32 s60, s60, %d" % (M0_PART - 3072))
    a("v_add_u32 v43, s60, v42")
    a("s_cmp_eq_u32 s%d, 0" % S_WAVE)
    a("s_cselect_b64 exec, 0, -1")
    for i in range(3):
        a("ds_write_b128 v43, v[%d:%d] offset:%d" % (144+4*i, 147+4*i, 1024*i))
    a("s_mov_b64 exec, -1")
    a("s_waitcnt lgkmcnt(0)")
    a("s_barrier")
    if "mid" in hooks: hooks["mid"](a)
    a("s_setprio 2")
    LH = a.uid("M0_h"); LV = a.uid("M0_v"); LE = a.uid("M0_end"); LKD = a.uid("M0_kd")
    st = hooks.get("st", "")
    a("s_cmp_lg_u32 s%d, 0" % S_WAVE)
    a("s_cbranch_scc1 %s" % LH)
    a("v_add_u32 v43, %d, v42" % M0_PART)
    for w in range(3):
        for i in range(3):
            a("ds_read_b128 v[%d:%d], v43 offset:%d" % (96+12*w+4*i, 99+12*w+4*i, 3072*w + 1024*i))
    a("v_lshrrev_b32 v2, 5, v1")
    a("v_and_b32 v3, 31, v1")
    a("s_lshr_b32 s60, s%d, 1" % SG)
    a("s_and_b32 s61, s%d, 1" % SG)
    a("s_lshr_b32 s62, s60, 3")
    a("s_and_b32 s60, s60, 7")
    a("s_mul_i32 s62, s62, %d" % KV_CHUNK)
    srd(a, R2, P_WS, KV_SIZE, KV_OFF)
    a("s_waitcnt lgkmcnt(0)")
    for r in range(12):
        a("v_add_f32 v%d, v%d, v%d" % (96+r, 96+r, 108+r))
        a("v_add_f32 v%d, v%d, v%d" % (144+r, 144+r, 120+r))
    for r in range(12):
        a("v_add_f32 v%d, v%d, v%d" % (144+r, 144+r, 96+r))
    a("s_cmp_lg_u32 s%d, 0" % SJOB)
    a("s_cbranch_scc1 %s" % LV)
    for i in range(6):
        a("v_cvt_pk_bf16_f32 v%d, v%d, v%d" % (96+i, 144+2*i, 145+2*i))
    a("v_lshlrev_b32 v42, 4, v3")
    a("v_lshl_add_u32 v42, v2, 9, v42")
    a("s_lshl_b32 s63, s60, 10")
    a("s_add_u32 s63, s63, s62")
    a("s_lshl_b32 s64, s61, 8")
    a("s_add_u32 s63, s63, s64")
    a("s_mov_b32 s66, 0x0000ffff")
    a("s_mov_b32 s67, 0x0000ffff")
    a("s_mov_b64 exec, s[66:67]")
    a("buffer_store_dwordx4 v[96:99], v42, s[%d:%d], s63 offen%s" % (R2, R2+3, st))
    a("v_lshlrev_b32 v42, 3, v3")
    a("s_lshl_b32 s63, s60, 8")
    a("s_add_u32 s63, s63, s62")
    a("s_lshl_b32 s64, s61, 7")
    a("s_add_u32 s63, s63, s64")
    a("s_add_u32 s63, s63, 8192")
    a("s_mov_b64 exec, 0xffff")
    a("buffer_store_dwordx2 v[100:101], v42, s[%d:%d], s63 offen%s" % (R2, R2+3, st))
    a("v_add_u32 v43, %d, v42" % M0_ST)
    a("ds_read_b64 v[102:103], v43")
    srd(a, R3, P_WS, STAT_SIZE, STAT_OFF)
    a("s_lshl_b32 s63, s%d, 7" % SG)
    a("s_waitcnt lgkmcnt(0)")
    a("buffer_store_dwordx2 v[102:103], v42, s[%d:%d], s63 offen%s" % (R3, R3+3, st))
    a("s_mov_b64 exec, -1")
    a("s_branch %s" % LKD)
    a.label(LV)
    for i in range(4):
        a("v_cvt_pk_bf16_f32 v%d, v%d, v%d" % (96+i, 144+2*i, 145+2*i))
    a("v_cmp_eq_u32 vcc, 20, v3")
    a("v_mov_b32 v42, s%d" % SONES)
    a("s_nop 0")
    for i in range(4):
        a("v_cndmask_b32 v%d, v%d, v42, vcc" % (96+i, 96+i))
    a("v_cmp_lt_u32 vcc, 20, v3")
    a("s_nop 1")
    for i in range(4):
        a("v_cndmask_b32 v%d, v%d, 0, vcc" % (96+i, 96+i))
    a("v_lshlrev_b32 v42, 4, v3")
    a("v_mul_u32_u24 v43, 384, v2")
    a("v_add_u32 v42, v42, v43")
    a("s_lshl_b32 s63, s60, 1")
    a("s_add_u32 s63, s63, s61")
    a("s_mul_i32 s63, s63, 768")
    a("s_add_u32 s63, s63, s62")
    a("s_add_u32 s63, s63, 10240")
    a("s_mov_b32 s66, 0x00ffffff")
    a("s_mov_b32 s67, 0x00ffffff")
    a("s_mov_b64 exec, s[66:67]")
    a("buffer_store_dwordx4 v[96:99], v42, s[%d:%d], s63 offen%s" % (R2, R2+3, st))
    a("s_mov_b64 exec, -1")
    a.label(LKD)
    ln_apply(a, Y, 8)
    for i in range(5):
        a("ds_write_b128 v41, v[%d:%d] offset:%d" % (8+4*i, 11+4*i, 256*i))
    if "kv_done" in hooks: hooks["kv_done"](a)
    a("s_branch %s" % LE)
    a.label(LH)
    ln_apply(a, Y, 8)
    for i in range(5):
        a("ds_write_b128 v41, v[%d:%d] offset:%d" % (8+4*i, 11+4*i, 256*i))
    a.label(LE)
    a("s_waitcnt lgkmcnt(0)")
    a("s_barrier")
    a("v_lshrrev_b32 v2, 5, v1")
    a("v_and_b32 v3, 15, v1")
    a("v_lshrrev_b32 v7, 2, v3")
    a("v_lshl_add_u32 v7, v2, 3, v7")
    a("v_mul_u32_u24 v7, %d, v7" % HT_STR)
    a("v_and_b32 v42, 3, v1")
    a("v_bfe_u32 v43, v1, 4, 1")
    a("v_lshl_add_u32 v42, v43, 2, v42")
    a("v_lshl_add_u32 v7, v42, 3, v7")
    a("s_mul_i32 s60, s%d, 10" % SJOB)
    a("s_add_u32 s60, s60, s%d" % S_WAVE)
    a("s_lshl_b32 s63, s60, 6")
    a("s_add_u32 s63, s63, %d" % M0_HT)
    a("v_add_u32 v7, s63, v7")
    for m in range(3):
        a("ds_read_b64_tr_b16 v[%d:%d], v7 offset:%d" % (96+4*m, 97+4*m, 256*m))
        a("ds_read_b64_tr_b16 v[%d:%d], v7 offset:%d" % (98+4*m, 99+4*m, 256*m + 4*HT_STR))
    srd(a, R2, P_WS, HF_SIZE, HF_OFF)
    a("v_lshlrev_b32 v6, 4, v1")
    a("s_lshl_b32 s63, s60, 7")
    a("s_add_u32 s63, s63, s%d" % SG)
    a("s_lshl_b32 s63, s63, 10")
    a("s_waitcnt lgkmcnt(0)")
    a("buffer_store_dwordx4 v[96:99], v6, s[%d:%d], s63 offen%s" % (R2, R2+3, st))
    a("s_add_u32 s63, s63, %d" % (4*128*1024))
    a("buffer_store_dwordx4 v[100:103], v6, s[%d:%d], s63 offen%s" % (R2, R2+3, st))
    a("s_add_u32 s63, s63, %d" % (4*128*1024))
    a("s_cmp_lt_u32 s%d, 2" % S_WAVE)
    a("s_cselect_b32 s63, s63, 0x40000000")
    a("buffer_store_dwordx4 v[104:107], v6, s[%d:%d], s63 offen%s" % (R2, R2+3, st))
```

```python
from common import *
import common, math, struct
def f2u(x): return struct.unpack("<I", struct.pack("<f", x))[0]
RW1, RH, RB1, RU = R0, R1, R2, R3
SFT, SDT, ST1, ST2, SCH, SWOFF, SHOFF, SRING = 35, 36, 60, 61, 62, 63, 64, 65
ACC = 128
HB = 64
import os
NS = int(os.environ.get('M1NS', '2'))
AF = 32
def acc(ft, dt): return ACC + 32*ft + 16*dt

def gen_m1(a, hooks=None):
    hooks = hooks or {}
    LEND = a.uid("M1_end")
    a("; ================= M1 =================")
    a("s_and_b32 s%d, s%d, 7" % (ST1, S_J))
    a("s_lshr_b32 s%d, s%d, 3" % (ST2, S_J))
    a("s_cmp_ge_u32 s%d, 30" % ST2)
    a("s_cbranch_scc1 %s" % LEND)
    a("s_mul_hi_u32 s%d, s%d, 0x55555556" % (SDT, ST2))
    a("s_mul_i32 s%d, s%d, 3" % (SFT, SDT))
    a("s_sub_u32 s%d, s%d, s%d" % (SFT, ST2, SFT))
    a("s_mul_i32 s%d, s%d, 3" % (ST1, ST1))
    a("s_add_u32 s%d, s%d, s%d" % (SFT, SFT, ST1))
    wave_lane(a, 1)
    srd(a, RW1, P_W1, S*F*2)
    srd(a, RH, P_WS, HF_SIZE, HF_OFF)
    a("v_lshrrev_b32 v2, 3, v1")
    a("s_lshl_b32 s%d, s%d, 9" % (ST1, S_WAVE))
    a("v_add_u32 v2, s%d, v2" % ST1)
    a("s_movk_i32 s%d, 3072" % ST1)
    a("v_mul_lo_u32 v2, v2, s%d" % ST1)
    a("v_bfe_u32 v3, v1, 4, 1")
    a("v_lshlrev_b32 v3, 2, v3")
    a("v_and_b32 v4, 7, v1")
    a("v_xor_b32 v3, v3, v4")
    a("v_lshl_add_u32 v2, v3, 4, v2")
    a("s_lshl_b32 s%d, s%d, 7" % (ST1, SFT))
    a("v_add_u32 v2, s%d, v2" % ST1)
    a("s_lshl_b32 s%d, s%d, 8" % (ST1, SDT))
    a("s_lshl_b32 s%d, s%d, 5" % (ST2, S_WAVE))
    a("s_add_u32 s%d, s%d, s%d" % (ST1, ST1, ST2))
    a("s_lshl_b32 s%d, s%d, 10" % (ST1, ST1))
    a("v_lshlrev_b32 v3, 4, v1")
    a("v_add_u32 v3, s%d, v3" % ST1)
    a("v_add_u32 v4, 0x20000, v3")
    a("s_lshl_b32 s%d, s%d, 14" % (SRING, S_WAVE))
    a("v_lshrrev_b32 v8, 5, v1")
    a("v_bfe_u32 v9, v1, 2, 2")
    a("v_lshl_add_u32 v10, v8, 3, v9")
    a("v_lshlrev_b32 v10, 7, v10")
    a("v_bfe_u32 v11, v1, 4, 1")
    a("v_bfe_u32 v12, v1, 1, 1")
    a("v_lshl_add_u32 v11, v11, 1, v12")
    a("v_lshrrev_b32 v12, 1, v9")
    a("v_lshlrev_b32 v12, 2, v12")
    a("v_xor_b32 v11, v11, v12")
    a("v_lshl_add_u32 v10, v11, 4, v10")
    a("v_and_b32 v11, 1, v1")
    a("v_lshl_add_u32 v10, v11, 3, v10")
    a("v_add_u32 v5, s%d, v10" % SRING)
    a("v_xor_b32 v6, 64, v5")
    ld = hooks.get("ld", "")
    def w_piece(slot, m):
        return ["s_add_u32 m0, s%d, %d" % (SRING, slot*4096 + m*1024),
                "s_add_u32 s%d, s%d, %d" % (ST1, SWOFF, m*8*3072),
                "buffer_load_dwordx4 v2, s[%d:%d], s%d offen lds" % (RW1, RW1+3, ST1)]
    def h_piece(slot, kk, dt):
        b = HB + 16*slot + 8*kk + 4*dt
        return ["buffer_load_dwordx4 v[%d:%d], v%d, s[%d:%d], s%d offen offset:%d%s" % (b, b+3, 3+dt, RH, RH+3, SHOFF, kk*1024, ld)]
    def issue_w(slot):
        for m in range(4):
            for x in w_piece(slot, m): a(x)
        a("s_add_u32 s%d, s%d, %d" % (SWOFF, SWOFF, 32*3072))
    def issue_h(slot):
        for kk in range(2):
            for dt in range(2):
                for x in h_piece(slot, kk, dt): a(x)
        a("s_add_u32 s%d, s%d, 2048" % (SHOFF, SHOFF))
    a("s_mov_b32 s%d, 0" % SWOFF)
    a("s_mov_b32 s%d, 0" % SHOFF)
    if "before_h" in hooks: hooks["before_h"](a)
    for sl in range(NS): issue_w(sl)
    for sl in range(NS): issue_h(sl)
    a("s_setprio %d" % int(os.environ.get("G1PRIO", "0")))
    a("s_mov_b32 s%d, 0" % SCH)
    LL = a.uid("M1_loop")
    def compute(slot, refill, first=False):
        for kk in range(2):
            for ft in range(2):
                b = AF + 8*kk + 4*ft
                for rd in range(2):
                    a("ds_read_b64_tr_b16 v[%d:%d], v%d offset:%d" % (b+2*rd, b+2*rd+1, 5+ft, slot*4096 + kk*2048 + rd*512))
        def M(kk, ft, dt): a(mfma(acc(ft, dt), AF + 8*kk + 4*ft, HB + 16*slot + 8*kk + 4*dt, None if (first and kk == 0) else acc(ft, dt)))
        def E(lst):
            if refill:
                for x in lst: a(x)
        a("s_waitcnt lgkmcnt(4)")
        M(0,0,0); M(0,0,1); M(0,1,0); E(h_piece(slot,0,0)); M(0,1,1); E(h_piece(slot,0,1))
        a("s_waitcnt lgkmcnt(0)")
        M(1,0,0); E(w_piece(slot,0)); M(1,0,1); E(w_piece(slot,1)); M(1,1,0); E(w_piece(slot,2)); E(h_piece(slot,1,0))
        M(1,1,1); E(w_piece(slot,3)); E(h_piece(slot,1,1))
        E(["s_add_u32 s%d, s%d, %d" % (SWOFF, SWOFF, 32*3072), "s_add_u32 s%d, s%d, 2048" % (SHOFF, SHOFF)])
    for sl in range(NS):
        a("s_waitcnt vmcnt(%d)" % (4*(NS-1-sl) + 8*sl))
        compute(sl, True, sl == 0)
    a.label(LL)
    for sl in range(NS):
        a("s_waitcnt vmcnt(%d)" % (8*(NS-1)))
        compute(sl, True)
    a("s_add_u32 s%d, s%d, 1" % (SCH, SCH))
    a("s_cmp_lt_u32 s%d, %d" % (SCH, 16//NS - 2))
    a("s_cbranch_scc1 %s" % LL)
    for sl in range(NS):
        a("s_waitcnt vmcnt(%d)" % (8*(NS-1-sl)))
        compute(sl, False)
    stamp(a, 5)
    a("s_setprio 2")
    if "after_loop" in hooks: hooks["after_loop"](a)
    srd(a, RB1, P_B1, F*2)
    a("s_lshr_b32 s%d, s%d, 1" % (ST1, S_WAVE))
    a("s_lshl_b32 s%d, s%d, 6" % (ST1, ST1))
    a("s_lshl_b32 s%d, s%d, 7" % (ST2, SFT))
    a("s_add_u32 s%d, s%d, s%d" % (ST1, ST1, ST2))
    a("v_lshlrev_b32 v9, 3, v8")
    for i in range(4):
        a("buffer_load_dwordx2 v[%d:%d], v9, s[%d:%d], s%d offen offset:%d" % (48+2*i, 49+2*i, RB1, RB1+3, ST1, 16*i))
    a.nop(12)
    a("s_barrier")
    a("v_lshlrev_b32 v10, 4, v1")
    a("s_lshl_b32 s%d, s%d, 12" % (ST1, S_WAVE))
    a("v_add_u32 v11, s%d, v10" % ST1)
    for t in range(4):
        for qd in range(4):
            b = ACC + 16*t + 4*qd
            a("ds_write_b128 v11, v[%d:%d] offset:%d" % (b, b+3, t*16384 + qd*1024))
    a("s_waitcnt lgkmcnt(0)")
    a("s_barrier")
    a("s_lshl_b32 s%d, s%d, 14" % (ST1, S_WAVE))
    a("v_add_u32 v11, s%d, v10" % ST1)
    for sw in range(4):
        for qd in range(4):
            b = 64 + 16*sw + 4*qd
            a("ds_read_b128 v[%d:%d], v11 offset:%d" % (b, b+3, sw*4096 + qd*1024))
    a("s_waitcnt vmcnt(0) lgkmcnt(0)")
    for r in range(16):
        a("v_add_f32 v%d, v%d, v%d" % (64+r, 64+r, 80+r))
        a("v_add_f32 v%d, v%d, v%d" % (96+r, 96+r, 112+r))
    for i in range(4):
        for p in range(2):
            a("v_lshlrev_b32 v%d, 16, v%d" % (80+4*i+2*p, 48+2*i+p))
            a("v_and_b32 v%d, 0xffff0000, v%d" % (80+4*i+2*p+1, 48+2*i+p))
    for r in range(16):
        a("v_add_f32 v%d, v%d, v%d" % (64+r, 64+r, 96+r))
    for r in range(16):
        a("v_add_f32 v%d, v%d, v%d" % (64+r, 64+r, 80+r))
    c0 = -2.0*math.sqrt(2.0/math.pi)*math.log2(math.e)
    c1 = c0*0.044715
    a("s_mov_b32 s%d, 0x%x" % (ST1, f2u(c0)))
    a("s_mov_b32 s%d, 0x%x" % (ST2, f2u(c1)))
    a("v_mov_b32 v12, s%d" % ST1)
    for r in range(16): a("v_mul_f32 v%d, v%d, v%d" % (80+r, 64+r, 64+r))
    for r in range(16): a("v_fma_f32 v%d, v%d, s%d, v12" % (80+r, 80+r, ST2))
    for r in range(16): a("v_mul_f32 v%d, v%d, v%d" % (80+r, 80+r, 64+r))
    for r in range(16): a("v_exp_f32 v%d, v%d" % (80+r, 80+r))
    for r in range(16): a("v_add_f32 v%d, 1.0, v%d" % (80+r, 80+r))
    for r in range(16): a("v_rcp_f32 v%d, v%d" % (80+r, 80+r))
    a("s_nop 0")
    for r in range(16): a("v_mul_f32 v%d, v%d, v%d" % (64+r, 64+r, 80+r))
    for i in range(8): a("v_cvt_pk_bf16_f32 v%d, v%d, v%d" % (96+i, 64+2*i, 65+2*i))
    srd(a, RU, P_WS, UF_SIZE, UF_OFF)
    a("s_and_b32 s%d, s%d, 1" % (ST1, S_WAVE))
    a("s_lshl_b32 s%d, s%d, 1" % (ST2, SDT))
    a("s_add_u32 s%d, s%d, s%d" % (ST1, ST1, ST2))
    a("s_mul_i32 s%d, s%d, 96" % (ST1, ST1))
    a("s_lshl_b32 s%d, s%d, 2" % (ST2, SFT))
    a("s_add_u32 s%d, s%d, s%d" % (ST1, ST1, ST2))
    a("s_and_b32 s%d, s%d, 2" % (ST2, S_WAVE))
    a("s_add_u32 s%d, s%d, s%d" % (ST1, ST1, ST2))
    a("s_lshl_b32 s%d, s%d, 10" % (ST1, ST1))
    st = hooks.get("st", "")
    a("buffer_store_dwordx4 v[96:99], v10, s[%d:%d], s%d offen%s" % (RU, RU+3, ST1, st))
    a("buffer_store_dwordx4 v[100:103], v10, s[%d:%d], s%d offen offset:1024%s" % (RU, RU+3, ST1, st))
    if "u_done" in hooks: hooks["u_done"](a)
    a.label(LEND)
    stamp(a, 6)
```

```python
from common import *
import common
RW2, RU, RWO, RO, RXO = R0, R1, R2, R3, R4
SSG, SDG, ST1, ST2, ST3, SCH, SWOFF, SUOFF, SRING = 35, 36, 60, 61, 62, 63, 64, 65, 66
ACC = 128
def acc(dt, st): return ACC + 32*dt + 16*st
UB = 32; FB = 112; OBF = 32
WREG = 20480
import os
NS = int(os.environ.get('M2NS', '2'))

def gen_m2(a, hooks=None):
    hooks = hooks or {}
    LEND = a.uid("M2_end")
    a("; ================= M2 =================")
    a("s_and_b32 s%d, s%d, 7" % (ST1, S_J))
    a("s_lshr_b32 s%d, s%d, 3" % (ST2, S_J))
    a("s_cmp_ge_u32 s%d, 28" % ST2)
    a("s_cbranch_scc1 %s" % LEND)
    a("s_mul_hi_u32 s%d, s%d, 0x24924925" % (ST3, ST2))
    a("s_mul_i32 s%d, s%d, 7" % (SDG, ST3))
    a("s_sub_u32 s%d, s%d, s%d" % (SDG, ST2, SDG))
    a("s_lshl_b32 s%d, s%d, 3" % (ST3, ST3))
    a("s_add_u32 s%d, s%d, s%d" % (SSG, ST1, ST3))
    wave_lane(a, 1)
    a("v_lshrrev_b32 v8, 5, v1")
    a("v_and_b32 v9, 31, v1")
    a("s_mul_i32 s%d, s%d, %d" % (SRING, S_WAVE, WREG))
    srd(a, RW2, P_W2, F*S*2)
    srd(a, RU, P_WS, UF_SIZE, UF_OFF)
    srd(a, RWO, P_WO, D*D*2)
    srd(a, RXO, P_X, S*D*2)
    a("s_lshl_b32 s%d, s%d, 6" % (ST1, SSG))
    a("v_add_u32 v16, s%d, v9" % ST1)
    a("v_lshlrev_b32 v30, 1, v16")
    a("s_movk_i32 s%d, 1280" % ST2)
    a("v_mul_lo_u32 v16, v16, s%d" % ST2)
    a("s_mul_i32 s%d, s%d, 192" % (ST1, SDG))
    a("s_lshl_b32 s%d, s%d, 4" % (ST2, S_WAVE))
    a("s_add_u32 s%d, s%d, s%d" % (ST1, ST1, ST2))
    a("v_lshl_add_u32 v16, v8, 3, v16")
    a("v_add_u32 v16, s%d, v16" % ST1)
    a("v_add_u32 v17, %d, v16" % (32*1280))
    for dt in range(3):
        for st in range(2):
            b = 18 + 4*dt + 2*st
            a("buffer_load_dwordx2 v[%d:%d], v%d, s[%d:%d], 0 offen offset:%d" % (b, b+1, 16+st, RXO, RXO+3, 64*dt))
    srd(a, RXO, P_B2, S*2)
    a("buffer_load_ushort v31, v30, s[%d:%d], 0 offen offset:64" % (RXO, RXO+3))
    a("buffer_load_ushort v30, v30, s[%d:%d], 0 offen" % (RXO, RXO+3))
    a("v_lshrrev_b32 v2, 3, v1")
    a("s_mul_i32 s%d, s%d, 384" % (ST1, S_WAVE))
    a("v_add_u32 v2, s%d, v2" % ST1)
    a("v_lshlrev_b32 v2, 12, v2")
    a("v_bfe_u32 v3, v1, 4, 1")
    a("v_lshlrev_b32 v3, 2, v3")
    a("v_and_b32 v4, 7, v1")
    a("v_xor_b32 v3, v3, v4")
    a("v_lshl_add_u32 v2, v3, 4, v2")
    a("s_lshl_b32 s%d, s%d, 7" % (ST1, SSG))
    a("v_add_u32 v2, s%d, v2" % ST1)
    a("s_lshl_b32 s%d, s%d, 3" % (ST1, S_WAVE))
    a("v_add_u32 v3, s%d, v9" % ST1)
    a("v_and_b32 v3, 31, v3")
    a("v_lshl_add_u32 v3, v8, 5, v3")
    a("v_lshlrev_b32 v10, 4, v3")
    a("s_mul_i32 s%d, s%d, 3" % (ST1, SDG))
    a("s_mul_i32 s%d, s%d, 24" % (ST2, S_WAVE))
    for dt in range(3):
        a("s_add_u32 s%d, s%d, %d" % (ST3, ST1, dt))
        a("s_min_u32 s%d, s%d, 19" % (ST3, ST3))
        a("s_mul_i32 s%d, s%d, 96" % (ST3, ST3))
        a("s_add_u32 s%d, s%d, s%d" % (ST3, ST3, ST2))
        a("s_lshl_b32 s%d, s%d, 10" % (ST3, ST3))
        a("v_add_u32 v%d, s%d, v10" % (3+dt, ST3))
    a("v_bfe_u32 v11, v1, 2, 2")
    a("v_lshl_add_u32 v10, v8, 2, v11")
    a("v_lshlrev_b32 v10, 7, v10")
    a("v_bfe_u32 v12, v1, 4, 1")
    a("v_bfe_u32 v13, v1, 1, 1")
    a("v_lshl_add_u32 v12, v12, 1, v13")
    a("v_lshrrev_b32 v13, 1, v11")
    a("v_lshlrev_b32 v13, 2, v13")
    a("v_xor_b32 v12, v12, v13")
    a("v_lshl_add_u32 v10, v12, 4, v10")
    a("v_and_b32 v12, 1, v1")
    a("v_lshl_add_u32 v10, v12, 3, v10")
    a("v_add_u32 v6, s%d, v10" % SRING)
    a("v_xor_b32 v7, 64, v6")
    a("v_lshl_add_u32 v10, v8, 3, v11")
    a("v_mul_u32_u24 v10, 192, v10")
    a("v_and_b32 v12, 3, v1")
    a("v_bfe_u32 v13, v1, 4, 1")
    a("v_lshl_add_u32 v12, v13, 2, v12")
    a("s_lshl_b32 s%d, s%d, 1" % (ST1, S_WAVE))
    a("v_add_u32 v12, s%d, v12" % ST1)
    a("v_and_b32 v12, 7, v12")
    a("v_lshl_add_u32 v10, v12, 3, v10")
    a("v_add_u32 v13, s%d, v10" % SRING)
    a("s_mul_i32 s%d, s%d, 160" % (ST1, S_WAVE))
    a("s_mul_i32 s%d, s%d, 192" % (ST2, SDG))
    a("s_movk_i32 s%d, 1280" % ST3)
    for m in range(3):
        a("v_add_u32 v112, %d, v1" % (64*m))
        a("v_mul_u32_u24 v113, 5462, v112")
        a("v_lshrrev_b32 v113, 16, v113")
        a("v_mul_u32_u24 v114, 12, v113")
        a("v_sub_u32 v114, v112, v114")
        a("v_add_u32 v113, s%d, v113" % ST1)
        a("v_mul_lo_u32 v113, v113, s%d" % ST3)
        a("v_lshl_add_u32 v113, v114, 4, v113")
        a("v_add_u32 v%d, s%d, v113" % (10+m, ST2))
    a("v_lshlrev_b32 v112, 6, v8")
    a("v_add_u32 v112, v112, v9")
    a("v_lshlrev_b32 v112, 3, v112")
    a("s_lshl_b32 s%d, s%d, 1" % (ST1, SSG))
    a("s_mul_i32 s%d, s%d, 160" % (ST1, ST1))
    a("s_mul_i32 s%d, s%d, 40" % (ST2, S_WAVE))
    a("s_add_u32 s%d, s%d, s%d" % (ST1, ST1, ST2))
    a("s_lshl_b32 s%d, s%d, 8" % (ST1, ST1))
    a("v_add_u32 v14, s%d, v112" % ST1)
    a("v_add_u32 v15, %d, v14" % (160*256))
    ld = hooks.get("ld", "")
    def w_piece(slot, m):
        return ["s_add_u32 m0, s%d, %d" % (SRING, slot*4096 + m*1024),
                "s_add_u32 s%d, s%d, %d" % (ST1, SWOFF, m*8*4096),
                "buffer_load_dwordx4 v2, s[%d:%d], s%d offen lds" % (RW2, RW2+3, ST1)]
    def u_piece(slot, kk, dt):
        b = UB + 24*slot + 12*kk + 4*dt
        return ["buffer_load_dwordx4 v[%d:%d], v%d, s[%d:%d], s%d offen offset:%d%s" % (b, b+3, 3+dt, RU, RU+3, SUOFF, kk*1024, ld)]
    def issue_w(slot):
        for m in range(4):
            for x in w_piece(slot, m): a(x)
        a("s_add_u32 s%d, s%d, %d" % (SWOFF, SWOFF, 32*4096))
    def issue_u(slot):
        for kk in range(2):
            for dt in range(3):
                for x in u_piece(slot, kk, dt): a(x)
        a("s_add_u32 s%d, s%d, 2048" % (SUOFF, SUOFF))
    def compute(slot, refill, first=False):
        for kk in range(2):
            for st in range(2):
                b = FB + 8*kk + 4*st
                for rd in range(2):
                    a("ds_read_b64_tr_b16 v[%d:%d], v%d offset:%d" % (b+2*rd, b+2*rd+1, 6+st, slot*4096 + kk*2048 + rd*1024))
        def M(kk, dt, st): a(mfma(acc(dt, st), UB + 24*slot + 12*kk + 4*dt, FB + 8*kk + 4*st, None if (first and kk == 0) else acc(dt, st)))
        def E(lst):
            if refill:
                for x in lst: a(x)
        a("s_waitcnt lgkmcnt(4)")
        for dt in range(3):
            M(0, dt, 0); M(0, dt, 1); E(u_piece(slot, 0, dt))
        a("s_waitcnt lgkmcnt(0)")
        M(1,0,0); E(w_piece(slot,0)); M(1,0,1); E(u_piece(slot,1,0))
        M(1,1,0); E(w_piece(slot,1)); M(1,1,1); E(u_piece(slot,1,1))
        M(1,2,0); E(w_piece(slot,2)); M(1,2,1); E(w_piece(slot,3)); E(u_piece(slot,1,2))
        E(["s_add_u32 s%d, s%d, %d" % (SWOFF, SWOFF, 32*4096), "s_add_u32 s%d, s%d, 2048" % (SUOFF, SUOFF)])
    a("s_mov_b32 s%d, 0" % SWOFF)
    a("s_mov_b32 s%d, 0" % SUOFF)
    for sl in range(NS): issue_w(sl)
    if "before_u" in hooks: hooks["before_u"](a)
    stamp(a, 7)
    for sl in range(NS): issue_u(sl)
    a("s_setprio %d" % int(os.environ.get("G2PRIO", "0")))
    a("s_mov_b32 s%d, 0" % SCH)
    for sl in range(NS):
        a("s_waitcnt vmcnt(%d)" % (6*(NS-1-sl) + 10*sl))
        compute(sl, True, sl == 0)
    LL = a.uid("M2_loop")
    a.label(LL)
    for sl in range(NS):
        a("s_waitcnt vmcnt(%d)" % (10*(NS-1)))
        compute(sl, True)
    a("s_add_u32 s%d, s%d, 1" % (SCH, SCH))
    a("s_cmp_lt_u32 s%d, %d" % (SCH, 12//NS - 2))
    a("s_cbranch_scc1 %s" % LL)
    for sl in range(NS):
        a("s_waitcnt vmcnt(%d)" % (10*(NS-1-sl)))
        compute(sl, False)
    stamp(a, 8)
    a("s_setprio 2")
    def wo_issue(ks):
        slot = ks % 6
        a("s_mov_b32 s%d, %d" % (ST1, ks*16*1280))
        for m in range(3):
            a("s_add_u32 m0, s%d, %d" % (SRING, slot*3072 + m*1024))
            a("s_nop 0")
            a("buffer_load_dwordx4 v%d, s[%d:%d], s%d offen lds" % (10+m, RWO, RWO+3, ST1))
    for ks in range(6): wo_issue(ks)
    if "before_o" in hooks: hooks["before_o"](a)
    srd(a, RO, P_WS, OQ_SIZE, OQ_OFF)
    for ks in range(10):
        a("s_mov_b32 s%d, %d" % (ST1, ks*1024))
        for st in range(2):
            for m in range(2):
                b = OBF + 8*ks + 4*st + 2*m
                a("buffer_load_dwordx2 v[%d:%d], v%d, s[%d:%d], s%d offen offset:%d%s" % (b, b+1, 14+st, RO, RO+3, ST1, m*256, ld))
    for ks in range(10):
        slot = ks % 6
        if ks <= 5: a("s_waitcnt vmcnt(%d)" % (36 - 4*ks + 3*min(ks, 4)))
        else:       a("s_waitcnt vmcnt(%d)" % (3*(9-ks)))
        for dt in range(3):
            for rd in range(2):
                b = FB + 4*dt + 2*rd
                a("ds_read_b64_tr_b16 v[%d:%d], v13 offset:%d" % (b, b+1, slot*3072 + rd*768 + dt*64))
        for dt in range(3):
            a("s_waitcnt lgkmcnt(%d)" % (2*(2-dt)))
            for st in range(2):
                a(mfma(acc(dt, st), FB + 4*dt, OBF + 8*ks + 4*st, acc(dt, st)))
        if ks < 4: wo_issue(ks+6)
    stamp(a, 9)
    a.nop(12)
    a("s_barrier")
    a("v_lshlrev_b32 v2, 4, v1")
    for ip in range(1, 4):
        a("s_add_u32 s%d, s%d, %d" % (ST1, S_WAVE, ip))
        a("s_and_b32 s%d, s%d, 3" % (ST1, ST1))
        a("s_mul_i32 s%d, s%d, 18432" % (ST1, ST1))
        a("v_add_u32 v3, s%d, v2" % ST1)
        for t in range(6):
            b = ACC + 16*t + 4*ip
            a("ds_write_b128 v3, v[%d:%d] offset:%d" % (b, b+3, (ip-1)*6144 + t*1024))
    a("s_waitcnt lgkmcnt(0)")
    a("s_barrier")
    a("s_mul_i32 s%d, s%d, 18432" % (ST1, S_WAVE))
    a("v_add_u32 v3, s%d, v2" % ST1)
    for sl in range(3):
        for t in range(6):
            b = 32 + 24*sl + 4*t
            a("ds_read_b128 v[%d:%d], v3 offset:%d" % (b, b+3, sl*6144 + t*1024))
    a("v_lshlrev_b32 v30, 16, v30")
    a("v_lshlrev_b32 v31, 16, v31")
    srd(a, RXO, P_OUT, S*D*2)
    a("s_waitcnt lgkmcnt(0)")
    LSK = a.uid("M2_skip")
    for dt in range(3):
        if dt == 2:
            a("s_cmp_eq_u32 s%d, 6" % SDG)
            a("s_cbranch_scc1 %s" % LSK)
        for st in range(2):
            t = 2*dt + st
            c = ACC + 16*t
            xb = 18 + 4*dt + 2*st
            for j in range(4):
                a("v_add_f32 v%d, v%d, v%d" % (32+4*t+j, 32+4*t+j, 56+4*t+j))
                a("v_add_f32 v%d, v%d, v%d" % (c+j, c+j, 80+4*t+j))
            for j in range(4):
                a("v_add_f32 v%d, v%d, v%d" % (c+j, c+j, 32+4*t+j))
            a("v_lshlrev_b32 v112, 16, v%d" % xb)
            a("v_and_b32 v113, 0xffff0000, v%d" % xb)
            a("v_lshlrev_b32 v114, 16, v%d" % (xb+1))
            a("v_and_b32 v115, 0xffff0000, v%d" % (xb+1))
            for j in range(4):
                a("v_add_f32 v%d, v%d, v%d" % (112+j, 112+j, 30+st))
            for j in range(4):
                a("v_add_f32 v%d, v%d, v%d" % (c+j, c+j, 112+j))
            a("v_cvt_pk_bf16_f32 v%d, v%d, v%d" % (c+4, c, c+1))
            a("v_cvt_pk_bf16_f32 v%d, v%d, v%d" % (c+5, c+2, c+3))
            a("buffer_store_dwordx2 v[%d:%d], v%d, s[%d:%d], 0 offen offset:%d" % (c+4, c+5, 16+st, RXO, RXO+3, 64*dt))
    a.label(LSK)
    a.label(LEND)
    stamp(a, 10)
```

```python
import sys, os
import common
common.PROFILE = bool(os.environ.get("PROF"))
from common import *
EXP = common.EXP
import m0

KD = """.section .rodata,"a"
.p2align 6
.amdhsa_kernel {name}
  .amdhsa_next_free_vgpr {nv}
  .amdhsa_next_free_sgpr 102
  .amdhsa_accum_offset {nv}
  .amdhsa_group_segment_fixed_size 0
  .amdhsa_kernarg_size 104
  .amdhsa_user_sgpr_count 2
  .amdhsa_user_sgpr_kernarg_segment_ptr 1
  .amdhsa_system_sgpr_workgroup_id_x 1
.end_amdhsa_kernel
.text
"""
def PROFILE_ON(): return common.PROFILE
def kernel_head(a, name):
    a.raw(".globl %s" % name)
    a.raw(".p2align 8")
    a.raw(".type %s,@function" % name)
    a.label(name)

def build_split(parts):
    a = Asm()
    launches = []
    body = Asm()
    body._uid = 0
    if "k1" in parts:
        name = "mixa_k1_kernel"
        kernel_head(body, name)
        body("s_cmp_ge_u32 s2, 256")
        body("s_cbranch_scc1 %s_end" % name)
        load_kernargs(body)
        body("s_mov_b32 s%d, s2" % S_J)
        m0.gen_m0(body, name + "_end", dict(args=lambda a: a("s_waitcnt lgkmcnt(0)")))
        body.label(name + "_end")
        body("s_endpgm")
        body.raw(KD.format(name=name, nv=256))
        launches.append((name, 256, 256, 81920))
    if "k2" in parts:
        import att, m1
        name = "mixa_k2_kernel"
        kernel_head(body, name)
        body("s_cmp_ge_u32 s2, 512")
        body("s_cbranch_scc1 %s_end" % name)
        load_kernargs(body)
        body("s_cmp_ge_u32 s2, 256")
        body("s_cbranch_scc1 %s_m" % name)
        att.gen_att(body)
        body("s_branch %s_end" % name)
        body.label(name + "_m")
        body("s_sub_u32 s%d, s2, 256" % S_J)
        body("s_waitcnt lgkmcnt(0)")
        m1.gen_m1(body)
        body.label(name + "_end")
        body("s_endpgm")
        body.raw(KD.format(name=name, nv=256))
        launches.append((name, 512, 256, 81920))
    if "k3" in parts:
        import m2
        name = "mixa_k3_kernel"
        kernel_head(body, name)
        body("s_cmp_ge_u32 s2, 256")
        body("s_cbranch_scc1 %s_end" % name)
        load_kernargs(body)
        body("s_mov_b32 s%d, s2" % S_J)
        body("s_waitcnt lgkmcnt(0)")
        m2.gen_m2(body)
        body.label(name + "_end")
        body("s_endpgm")
        body.raw(KD.format(name=name, nv=256))
        launches.append((name, 256, 256, 81920))
    return launches, body.text()

def build_fused():
    import att, m1, m2
    name = "parallel_sum__grouped_kv_mqa__mixer_token_mlp__prompt_kernel"
    a = Asm()
    kernel_head(a, name)
    LM, LE = name + "_m", name + "_end"
    a("s_cmp_ge_u32 s2, 512")
    a("s_cbranch_scc1 %s" % LE)
    load_kernargs(a)
    a("s_cmp_ge_u32 s2, 256")
    a("s_cbranch_scc1 %s" % LM)
    def q_tail(a):
        init_load(a, 254)
    def wait_kv(a):
        if EXP.get("aonly"): return
        LS = a.uid("A_ic")
        a("s_cmp_lg_u32 s%d, 0" % S_WAVE)
        a("s_cbranch_scc1 %s" % LS)
        init_check(a, 254)
        a.label(LS)
        wait_phase0(a, 20)
        stamp(a, 10)
    def o_done(a):
        a("s_waitcnt vmcnt(0)")
        a("s_barrier")
        a("s_cmp_lg_u32 s%d, 0" % S_WAVE)
        LS = a.uid("A_noarr")
        a("s_cbranch_scc1 %s" % LS)
        a("s_add_u32 s76, s%d, %d" % (P_WS, FO_OFF))
        a("s_addc_u32 s77, s%d, 0" % (P_WS+1))
        a("s_lshl_b32 s64, s%d, 8" % att.STG)
        arrive(a, 76, 64, 20)
        a.label(LS)
    att.gen_att(a, dict(wait_kv=wait_kv, q_tail=q_tail, o_done=o_done, st=" sc1", ld=" sc1"))
    a("s_branch %s" % LE)
    a.label(LM)
    if EXP.get("aonly"): a("s_endpgm")
    a("s_sub_u32 s%d, s2, 256" % S_J)
    a("s_setprio %d" % int(os.environ.get("MPRIO", "2")))
    def m_args(a):
        a("s_waitcnt lgkmcnt(0)")
        stamp_init(a); stamp_rt(a, 0); stamp(a, 1)
        LZ = a.uid("M_nozero")
        a("s_cmp_lg_u32 s%d, 0" % S_J)
        a("s_cbranch_scc1 %s" % LZ)
        a("v_cmp_gt_u32 vcc, 64, v0")
        a("s_nop 1")
        a("s_cmp_eq_u64 vcc, 0")
        a("s_cbranch_scc1 %s" % LZ)
        a("v_lshlrev_b32 v250, 8, v0")
        a("v_mov_b32 v249, 0")
        srd(a, R4, P_WS, FLAG_BYTES)
        a("buffer_store_dword v249, v250, s[%d:%d], 0 offen sc1" % (R4, R4+3))
        for k in (1, 2):
            a("v_add_u32 v251, %d, v250" % (16384*k))
            a("buffer_store_dword v249, v251, s[%d:%d], 0 offen sc1" % (R4, R4+3))
        a.label(LZ)
    def after_x(a):
        L = a.uid("M_noinit")
        a("s_lshl_b32 s64, s%d, 2" % S_J)
        a("s_add_u32 s64, s64, s%d" % S_WAVE)
        a("s_cmp_lg_u32 s64, 0")
        a("s_cbranch_scc1 %s" % L)
        a("v_mov_b32 v252, 1")
        a("v_mov_b32 v253, 0")
        a("s_mov_b64 exec, 1")
        a("global_store_dword v253, v252, s[%d:%d] sc1" % (P_DBG, P_DBG+1))
        a("s_mov_b64 exec, -1")
        a.label(L)
    def counter_arrive(a, off):
        a("s_add_u32 s76, s%d, %d" % (P_WS, off))
        a("s_addc_u32 s77, s%d, 0" % (P_WS+1))
        a("s_and_b32 s64, s%d, 63" % S_J)
        a("s_lshl_b32 s64, s64, 8")
        arrive(a, 76, 64, 252)
    def kv_done(a):
        a("s_waitcnt vmcnt(0)")
        init_check(a, 254)
        counter_arrive(a, P0_OFF)
    m0.gen_m0(a, None, dict(st=" sc1", args=m_args, after_x=after_x, mid=lambda a: init_load(a, 254), kv_done=kv_done))
    stamp(a, 2)
    a("s_waitcnt vmcnt(0)")
    a("s_barrier")
    LS = a.uid("M_noarr")
    a("s_cmp_lg_u32 s%d, 0" % S_WAVE)
    a("s_cbranch_scc1 %s" % LS)
    counter_arrive(a, PH_OFF)
    a.label(LS)
    stamp(a, 3)
    if EXP.get("m0only"):
        if PROFILE_ON(): stamp_flush(a)
        a("s_endpgm")
    def before_h(a):
        wait_phase0(a, 20, PH_OFF, pre=int(os.environ.get('HPRE', '56')), slp=int(os.environ.get('HSLP', '16')))
        stamp(a, 12)
        if EXP.get("m0poll"):
            stamp_flush(a)
            a("s_endpgm")
    def u_done(a):
        a("s_waitcnt vmcnt(0)")
        a("s_barrier")
        L2 = a.uid("M_noarr")
        a("s_cmp_lg_u32 s%d, 0" % S_WAVE)
        a("s_cbranch_scc1 %s" % L2)
        a("s_add_u32 s76, s%d, %d" % (P_WS, FU_OFF))
        a("s_addc_u32 s77, s%d, 0" % (P_WS+1))
        a("s_lshl_b32 s64, s%d, 8" % m1.SDT)
        arrive(a, 76, 64, 20)
        a.label(L2)
    m1.gen_m1(a, dict(before_h=before_h, u_done=u_done, st=" sc1", ld=" sc1"))
    a("s_barrier")
    def before_u(a):
        a("s_mul_i32 s76, s%d, 96" % m2.SDG)
        a("s_lshr_b32 s77, s76, 6")
        a("s_add_u32 s76, s76, 95")
        a("s_lshr_b32 s76, s76, 6")
        a("s_min_u32 s76, s76, 9")
        a("v_and_b32 v112, 1, v0")
        a("v_mov_b32 v113, s77")
        a("v_mov_b32 v114, s76")
        a("v_cmp_eq_u32 vcc, 0, v112")
        a("s_nop 1")
        a("v_cndmask_b32 v112, v114, v113, vcc")
        a("v_lshlrev_b32 v112, 8, v112")
        a("s_add_u32 s76, s%d, %d" % (P_WS, FU_OFF))
        a("s_addc_u32 s77, s%d, 0" % (P_WS+1))
        poll_loop(a, lambda a: a("global_load_dword v113, v112, s[76:77] sc1"),
                  lambda a: a("v_cmp_ne_u32 vcc, 24, v113"), 112)
    def before_o(a):
        a("s_lshl_b32 s76, s%d, 8" % m2.SSG)
        a("v_mov_b32 v112, s76")
        a("s_add_u32 s76, s%d, %d" % (P_WS, FO_OFF))
        a("s_addc_u32 s77, s%d, 0" % (P_WS+1))
        poll_loop(a, lambda a: a("global_load_dword v113, v112, s[76:77] sc1"),
                  lambda a: a("v_cmp_ne_u32 vcc, 8, v113"), 112)
        stamp(a, 13)
    m2.gen_m2(a, dict(before_u=before_u, before_o=before_o, ld=" sc1"))
    if common.PROFILE:
        a("s_waitcnt vmcnt(0)")
        stamp(a, 14); stamp_rt(a, 15)
        stamp_flush(a)
    a.label(LE)
    a("s_endpgm")
    a.raw(KD.format(name=name, nv=256))
    return [(name, 512, 256, 81920)], a.text()

def header(launches):
    ref = open("parallel_sum__grouped_kv_mqa__mixer_token_mlp__prompt.s.ref").read().split("\n")
    out = []
    for l in ref:
        if l.startswith("; @launch"): break
        if l.startswith("; Override launch"): continue
        if l.startswith("; grid=ceil"): continue
        out.append(l)
    for (n, g, b, lds) in launches:
        if len(launches) == 1 and n.startswith("parallel"):
            out.append("; @launch grid=(%d,1,1) block=(%d,1,1) lds=%d" % (g, b, lds))
        else:
            out.append("; @launch kernel=%s grid=(%d,1,1) block=(%d,1,1) lds=%d" % (n, g, b, lds))
    out.append('.amdgcn_target "amdgcn-amd-amdhsa--gfx950"')
    out.append(".text")
    return "\n".join(out) + "\n"

if __name__ == "__main__":
    mode = sys.argv[1]
    outp = sys.argv[2]
    if mode.startswith("split"):
        parts = mode.split(":")[1].split(",") if ":" in mode else ["k1","k2","k3"]
        launches, text = build_split(parts)
    elif mode == "fused":
        launches, text = build_fused()
    open(outp, "w").write(header(launches) + text)
    print(launches, len(text))
```

```python
import sys, os
import common
common.PROFILE = bool(os.environ.get("PROF"))
from common import *
EXP = common.EXP
import m0

KD = """.section .rodata,"a"
.p2align 6
.amdhsa_kernel {name}
  .amdhsa_next_free_vgpr {nv}
  .amdhsa_next_free_sgpr 102
  .amdhsa_accum_offset {nv}
  .amdhsa_group_segment_fixed_size 0
  .amdhsa_kernarg_size 104
  .amdhsa_user_sgpr_count 2
  .amdhsa_user_sgpr_kernarg_segment_ptr 1
  .amdhsa_system_sgpr_workgroup_id_x 1
.end_amdhsa_kernel
.text
"""
def PROFILE_ON(): return common.PROFILE
def kernel_head(a, name):
    a.raw(".globl %s" % name)
    a.raw(".p2align 8")
    a.raw(".type %s,@function" % name)
    a.label(name)

def build_split(parts):
    a = Asm()
    launches = []
    body = Asm()
    body._uid = 0
    if "k1" in parts:
        name = "mixa_k1_kernel"
        kernel_head(body, name)
        body("s_cmp_ge_u32 s2, 256")
        body("s_cbranch_scc1 %s_end" % name)
        load_kernargs(body)
        body("s_mov_b32 s%d, s2" % S_J)
        m0.gen_m0(body, name + "_end", dict(args=lambda a: a("s_waitcnt lgkmcnt(0)")))
        body.label(name + "_end")
        body("s_endpgm")
        body.raw(KD.format(name=name, nv=256))
        launches.append((name, 256, 256, 81920))
    if "k2" in parts:
        import att, m1
        name = "mixa_k2_kernel"
        kernel_head(body, name)
        body("s_cmp_ge_u32 s2, 512")
        body("s_cbranch_scc1 %s_end" % name)
        load_kernargs(body)
        body("s_cmp_ge_u32 s2, 256")
        body("s_cbranch_scc1 %s_m" % name)
        att.gen_att(body)
        body("s_branch %s_end" % name)
        body.label(name + "_m")
        body("s_sub_u32 s%d, s2, 256" % S_J)
        body("s_waitcnt lgkmcnt(0)")
        m1.gen_m1(body)
        body.label(name + "_end")
        body("s_endpgm")
        body.raw(KD.format(name=name, nv=256))
        launches.append((name, 512, 256, 81920))
    if "k3" in parts:
        import m2
        name = "mixa_k3_kernel"
        kernel_head(body, name)
        body("s_cmp_ge_u32 s2, 256")
        body("s_cbranch_scc1 %s_end" % name)
        load_kernargs(body)
        body("s_mov_b32 s%d, s2" % S_J)
        body("s_waitcnt lgkmcnt(0)")
        m2.gen_m2(body)
        body.label(name + "_end")
        body("s_endpgm")
        body.raw(KD.format(name=name, nv=256))
        launches.append((name, 256, 256, 81920))
    return launches, body.text()

def build_fused():
    import att, m1, m2
    name = "parallel_sum__grouped_kv_mqa__mixer_token_mlp__prompt_kernel"
    a = Asm()
    kernel_head(a, name)
    LM, LE = name + "_m", name + "_end"
    a("s_cmp_ge_u32 s2, 512")
    a("s_cbranch_scc1 %s" % LE)
    if common.PROFILE: a("s_memrealtime s[96:97]")
    load_kernargs(a)
    if not EXP.get("nocodepf"):
        LPC = a.uid("PC")
        a("s_getpc_b64 s[76:77]")
        a.label(LPC)
        a("s_lshr_b32 s78, s2, 3")
        a("s_lshl_b32 s78, s78, 2")
        a("v_lshrrev_b32 v252, 6, v0")
        a("v_add_u32 v252, s78, v252")
        a("v_lshlrev_b32 v252, 7, v252")
        a("v_min_u32 v252, %s_end-%s, v252" % (name, LPC))
        a("global_load_dword v253, v252, s[76:77]")
    a("s_cmp_ge_u32 s2, 256")
    a("s_cbranch_scc1 %s" % LM)
    def q_tail(a):
        init_load(a, 254)
    def wait_kv(a):
        if EXP.get("aonly"): return
        LS = a.uid("A_ic")
        a("s_cmp_lg_u32 s%d, 0" % S_WAVE)
        a("s_cbranch_scc1 %s" % LS)
        init_check(a, 254)
        a.label(LS)
        wait_phase0(a, 20)
        stamp(a, 10)
    def o_done(a):
        a("s_waitcnt vmcnt(0)")
        a("s_barrier")
        a("s_cmp_lg_u32 s%d, 0" % S_WAVE)
        LS = a.uid("A_noarr")
        a("s_cbranch_scc1 %s" % LS)
        a("s_add_u32 s76, s%d, %d" % (P_WS, FO_OFF))
        a("s_addc_u32 s77, s%d, 0" % (P_WS+1))
        a("s_lshl_b32 s64, s%d, 8" % att.STG)
        arrive(a, 76, 64, 20)
        a.label(LS)
    att.gen_att(a, dict(wait_kv=wait_kv, q_tail=q_tail, o_done=o_done, st=" sc1", ld=" sc1"))
    a("s_branch %s" % LE)
    a.label(LM)
    if EXP.get("aonly"): a("s_endpgm")
    a("s_sub_u32 s%d, s2, 256" % S_J)
    a("s_setprio %d" % int(os.environ.get("MPRIO", "2")))
    def m_args(a):
        a("s_waitcnt lgkmcnt(0)")
        stamp_init(a); stamp_rt(a, 0); stamp(a, 1)
        LZ = a.uid("M_nozero")
        a("s_cmp_lg_u32 s%d, 0" % S_J)
        a("s_cbranch_scc1 %s" % LZ)
        a("v_cmp_gt_u32 vcc, 64, v0")
        a("s_nop 1")
        a("s_cmp_eq_u64 vcc, 0")
        a("s_cbranch_scc1 %s" % LZ)
        a("v_lshlrev_b32 v250, 8, v0")
        a("v_mov_b32 v249, 0")
        srd(a, R4, P_WS, FLAG_BYTES)
        a("buffer_store_dword v249, v250, s[%d:%d], 0 offen sc1" % (R4, R4+3))
        for k in (1, 2):
            a("v_add_u32 v251, %d, v250" % (16384*k))
            a("buffer_store_dword v249, v251, s[%d:%d], 0 offen sc1" % (R4, R4+3))
        a.label(LZ)
    def after_x(a):
        L = a.uid("M_noinit")
        a("s_lshl_b32 s64, s%d, 2" % S_J)
        a("s_add_u32 s64, s64, s%d" % S_WAVE)
        a("s_cmp_lg_u32 s64, 0")
        a("s_cbranch_scc1 %s" % L)
        a("v_mov_b32 v252, 1")
        a("v_mov_b32 v253, 0")
        a("s_mov_b64 exec, 1")
        a("global_store_dword v253, v252, s[%d:%d] sc1" % (P_DBG, P_DBG+1))
        a("s_mov_b64 exec, -1")
        a.label(L)
    def counter_arrive(a, off):
        a("s_add_u32 s76, s%d, %d" % (P_WS, off))
        a("s_addc_u32 s77, s%d, 0" % (P_WS+1))
        a("s_and_b32 s64, s%d, 63" % S_J)
        a("s_lshl_b32 s64, s64, 8")
        arrive(a, 76, 64, 252)
    def kv_done(a):
        a("s_waitcnt vmcnt(0)")
        init_check(a, 254)
        counter_arrive(a, P0_OFF)
    m0.gen_m0(a, None, dict(st=" sc1", args=m_args, after_x=after_x, mid=lambda a: init_load(a, 254), kv_done=kv_done))
    stamp(a, 2)
    a("s_waitcnt vmcnt(0)")
    a("s_barrier")
    LS = a.uid("M_noarr")
    a("s_cmp_lg_u32 s%d, 0" % S_WAVE)
    a("s_cbranch_scc1 %s" % LS)
    counter_arrive(a, PH_OFF)
    a.label(LS)
    stamp(a, 3)
    if EXP.get("m0only"):
        if PROFILE_ON(): stamp_flush(a)
        a("s_endpgm")
    def before_h(a):
        wait_phase0(a, 20, PH_OFF, pre=int(os.environ.get('HPRE', '56')), slp=int(os.environ.get('HSLP', '16')))
        stamp(a, 12)
        if EXP.get("m0poll"):
            stamp_flush(a)
            a("s_endpgm")
    def u_done(a):
        a("s_waitcnt vmcnt(0)")
        a("s_barrier")
        L2 = a.uid("M_noarr")
        a("s_cmp_lg_u32 s%d, 0" % S_WAVE)
        a("s_cbranch_scc1 %s" % L2)
        a("s_add_u32 s76, s%d, %d" % (P_WS, FU_OFF))
        a("s_addc_u32 s77, s%d, 0" % (P_WS+1))
        a("s_lshl_b32 s64, s%d, 8" % m1.SDT)
        arrive(a, 76, 64, 20)
        a.label(L2)
    def loader(a):
        L = a.uid("M_noload")
        a("s_lshr_b32 s66, s%d, 3" % S_J)
        a("s_cmp_lt_u32 s66, 30")
        a("s_cbranch_scc1 %s" % L)
        a("s_sub_u32 s66, s66, 30")
        a("s_lshl_b32 s66, s66, 3")
        a("s_and_b32 s67, s%d, 7" % S_J)
        a("s_add_u32 s66, s66, s67")
        a("s_lshl_b32 s66, s66, 2")
        a("s_add_u32 s66, s66, s%d" % S_WAVE)
        a("v_and_b32 v13, 63, v0")
        a("v_lshlrev_b32 v13, 7, v13")
        a("s_mul_i32 s67, s66, %d" % (768*128))
        for (ptr, size) in ((P_W1, S*F*2), (P_W2, F*S*2)):
            srd(a, R4, ptr, size)
            for k in range(12):
                a("s_add_u32 s68, s67, %d" % (k*8192))
                a("buffer_load_dword v255, v13, s[%d:%d], s68 offen" % (R4, R4+3))
        srd(a, R4, P_WO, D*D*2)
        a("s_mul_i32 s67, s66, %d" % (128*128))
        for k in range(2):
            a("s_add_u32 s68, s67, %d" % (k*8192))
            a("buffer_load_dword v255, v13, s[%d:%d], s68 offen" % (R4, R4+3))
        a("s_waitcnt vmcnt(0)")
        a.label(L)
    if not EXP.get("nowpf"): loader(a)
    m1.gen_m1(a, dict(before_h=before_h, u_done=u_done, st=" sc1", ld=" sc1"))
    a("s_barrier")
    def before_u(a):
        a("s_mul_i32 s76, s%d, 96" % m2.SDG)
        a("s_lshr_b32 s77, s76, 6")
        a("s_add_u32 s76, s76, 95")
        a("s_lshr_b32 s76, s76, 6")
        a("s_min_u32 s76, s76, 9")
        a("v_and_b32 v112, 1, v0")
        a("v_mov_b32 v113, s77")
        a("v_mov_b32 v114, s76")
        a("v_cmp_eq_u32 vcc, 0, v112")
        a("s_nop 1")
        a("v_cndmask_b32 v112, v114, v113, vcc")
        a("v_lshlrev_b32 v112, 8, v112")
        a("s_add_u32 s76, s%d, %d" % (P_WS, FU_OFF))
        a("s_addc_u32 s77, s%d, 0" % (P_WS+1))
        poll_loop(a, lambda a: a("global_load_dword v113, v112, s[76:77] sc1"),
                  lambda a: a("v_cmp_ne_u32 vcc, 24, v113"), 112)
    def before_o(a):
        a("s_lshl_b32 s76, s%d, 8" % m2.SSG)
        a("v_mov_b32 v112, s76")
        a("s_add_u32 s76, s%d, %d" % (P_WS, FO_OFF))
        a("s_addc_u32 s77, s%d, 0" % (P_WS+1))
        poll_loop(a, lambda a: a("global_load_dword v113, v112, s[76:77] sc1"),
                  lambda a: a("v_cmp_ne_u32 vcc, 8, v113"), 112)
        stamp(a, 11)
    m2.gen_m2(a, dict(before_u=before_u, before_o=before_o, ld=" sc1"))
    if common.PROFILE:
        a("s_waitcnt vmcnt(0)")
        stamp(a, 14); stamp_rt(a, 13)
        stamp_flush(a)
    a.label(LE)
    a("s_endpgm")
    a.raw(KD.format(name=name, nv=256))
    return [(name, 512, 256, 81920)], a.text()

def header(launches):
    ref = open("parallel_sum__grouped_kv_mqa__mixer_token_mlp__prompt.s.ref").read().split("\n")
    out = []
    for l in ref:
        if l.startswith("; @launch"): break
        if l.startswith("; Override launch"): continue
        if l.startswith("; grid=ceil"): continue
        out.append(l)
    for (n, g, b, lds) in launches:
        if len(launches) == 1 and n.startswith("parallel"):
            out.append("; @launch grid=(%d,1,1) block=(%d,1,1) lds=%d" % (g, b, lds))
        else:
            out.append("; @launch kernel=%s grid=(%d,1,1) block=(%d,1,1) lds=%d" % (n, g, b, lds))
    out.append('.amdgcn_target "amdgcn-amd-amdhsa--gfx950"')
    out.append(".text")
    return "\n".join(out) + "\n"

if __name__ == "__main__":
    mode = sys.argv[1]
    outp = sys.argv[2]
    if mode.startswith("split"):
        parts = mode.split(":")[1].split(",") if ":" in mode else ["k1","k2","k3"]
        launches, text = build_split(parts)
    elif mode == "fused":
        launches, text = build_fused()
    open(outp, "w").write(header(launches) + text)
    print(launches, len(text))
```

```python
from common import *
import common
PROFILE = common.PROFILE
EXP = common.EXP
import math, struct
import os as _os
def f2u(x): return struct.unpack("<I", struct.pack("<f", x))[0]
KVS0, KVS1 = 0, 32768
ST0, ST_STR = 0, 18432
EXS = 79872; EXC = EXS + 512; EXF = EXC + 512
STG, SHG, SHEAD, STTA, STTB, STL = 35, 36, 37, 38, 39, 5
SONES = 6
SKC, SDST, SDEL, SSTG, ST1, ST2, ST3 = 60, 61, 62, 63, 64, 65, 66
SC, SKVD, SKVO, SPASS = 67, 68, 69, 70
SWN0, SWN1, SWN2 = 71, 72, 73
SXO, SWO, SXD, SXW = 74, 75, 76, 77
SD2, SWO2 = 98, 99
QDUMMY = 77824
RX, RW, RKV, RO = R0, R1, R2, R3
VL, VH, VT = 1, 2, 3
Q1 = (80, 88); Q2 = (84, 86)
SB = (96, 112); OB = (128, 144); CB = (160, 176)
TB = 192; PB = 200
K1 = (208, 212); K2 = (216, 220); V1 = (224, 228); V2 = (232, 236)
KAC, KAN, K2C, K2N, VAC, VAN = 240, 241, 242, 243, 244, 245
VKVD, VOST = 246, 247

def kv_dma(a, sdst, soff, ld=''):
    g = []
    g.append(["s_mul_i32 s%d, s%d, 6144" % (ST1, S_WAVE), "s_add_u32 m0, s%d, s%d" % (sdst, ST1), "s_add_u32 s%d, s%d, 4096" % (ST2, soff),
              "buffer_load_dwordx4 v%d, s[%d:%d], s%d offen%s lds" % (VKVD, RKV, RKV+3, soff, ld)])
    for k in (1, 2, 3):
        g.append(["buffer_load_dwordx4 v%d, s[%d:%d], s%d offen offset:%d%s lds" % (VKVD, RKV, RKV+3, soff, 1024*k, ld)])
    g.append(["s_add_u32 m0, m0, 4096", "s_nop 0", "buffer_load_dwordx4 v%d, s[%d:%d], s%d offen%s lds" % (VKVD, RKV, RKV+3, ST2, ld)])
    g.append(["buffer_load_dwordx4 v%d, s[%d:%d], s%d offen offset:1024%s lds" % (VKVD, RKV, RKV+3, ST2, ld)])
    return g

def qproj_dma_prep(a):
    a("s_lshl_b32 s%d, s%d, 7" % (SXO, ST3))
    a("s_cmp_lt_u32 s%d, 10" % ST3)
    a("s_cselect_b32 s%d, s%d, 0x40000000" % (SXO, SXO))
    a("s_mul_i32 s%d, s%d, 81920" % (SWO, ST3))
    a("s_add_u32 s%d, s%d, s%d" % (SXD, SDST, SXW))
    a("s_cmp_lt_u32 s%d, 2" % S_WAVE)
    a("s_cselect_b32 s%d, s%d, 0" % (SD2, SDST))
    a("s_cselect_b32 s%d, s%d, 0x40000000" % (SWO2, SWO))
def qproj_dma_pieces():
    g = []
    g.append(["s_mov_b32 m0, s%d" % SXD, "s_add_u32 s%d, s%d, 64" % (ST1, SXO),
              "buffer_load_dwordx4 v4, s[%d:%d], s%d offen lds" % (RX, RX+3, SXO)])
    g.append(["s_add_u32 m0, s%d, 4096" % SXD, "s_nop 0",
              "buffer_load_dwordx4 v4, s[%d:%d], s%d offen lds" % (RX, RX+3, ST1)])
    for m, sn in enumerate((SWN0, SWN1, SWN2)):
        g.append(["s_add_u32 m0, s%d, s%d" % (SDST if m < 2 else SD2, sn), "s_nop 0",
                  "buffer_load_dwordx4 v%d, s[%d:%d], s%d offen lds" % (5+m, RW, RW+3, SWO if m < 2 else SWO2)])
    return g

def dq_of_mq(a, vl, dst, t1, t2):
    a("v_and_b32 v%d, 3, v%d" % (t1, vl))
    a("v_bfe_u32 v%d, v%d, 4, 1" % (t2, vl))
    a("v_lshl_add_u32 v%d, v%d, 2, v%d" % (t1, t2, t1))
    a("v_lshrrev_b32 v%d, 1, v%d" % (t2, t1))
    a("v_xor_b32 v%d, v%d, v%d" % (t2, t2, t1))
    a("v_and_b32 v%d, 1, v%d" % (t2, t2))
    a("v_mul_u32_u24 v%d, 3, v%d" % (t2, t2))
    a("v_xor_b32 v%d, v%d, v%d" % (t2, t2, t1))
    a("v_cmp_gt_u32 vcc, 4, v%d" % t1)
    a("v_mov_b32 v%d, 4" % dst)
    a("s_nop 0")
    a("v_cndmask_b32 v%d, v%d, v%d, vcc" % (dst, dst, t2))

def gen_qproj(a, hooks):
    a("; ---------- q projection ----------")
    a("v_lshrrev_b32 v20, 2, v%d" % VL)
    a("s_lshl_b32 s%d, s%d, 6" % (ST1, STG))
    a("s_lshl_b32 s%d, s%d, 4" % (ST2, S_WAVE))
    a("s_add_u32 s%d, s%d, s%d" % (ST1, ST1, ST2))
    a("v_add_u32 v20, s%d, v20" % ST1)
    a("s_movk_i32 s%d, 1280" % ST3)
    a("v_mul_lo_u32 v20, v20, s%d" % ST3)
    a("v_and_b32 v21, 3, v%d" % VL)
    a("v_bfe_u32 v22, v%d, 4, 2" % VL)
    a("v_xor_b32 v21, v21, v22")
    a("v_lshl_add_u32 v4, v21, 4, v20")
    a("s_add_u32 s%d, s%d, 4" % (SWN1, S_WAVE))
    a("s_add_u32 s%d, s%d, 8" % (SWN2, S_WAVE))
    a("s_cmp_lt_u32 s%d, 2" % S_WAVE)
    a("s_cselect_b32 s%d, s%d, s%d" % (SWN2, SWN2, SWN1))
    a("s_mov_b32 s%d, s%d" % (SWN0, S_WAVE))
    a("s_mul_i32 s%d, s%d, 160" % (ST2, SHG))
    for m, sn in enumerate((SWN0, SWN1, SWN2)):
        a("s_lshl_b32 s%d, s%d, 6" % (ST1, sn))
        a("v_add_u32 v20, s%d, v%d" % (ST1, VL))
        a("v_mul_u32_u24 v21, 6554, v20")
        a("v_lshrrev_b32 v21, 16, v21")
        a("v_mul_u32_u24 v22, 10, v21")
        a("v_sub_u32 v22, v20, v22")
        a("v_mul_lo_u32 v21, v21, s%d" % ST3)
        a("v_lshl_add_u32 v21, v22, 4, v21")
        a("v_add_u32 v%d, s%d, v21" % (5+m, ST2))
        a("s_lshl_b32 s%d, s%d, 10" % (sn, sn))
        a("s_add_u32 s%d, s%d, 8192" % (sn, sn))
        if m == 2:
            a("s_cmp_lt_u32 s%d, 2" % S_WAVE)
            a("s_cselect_b32 s%d, s%d, %d" % (sn, sn, QDUMMY))
    a("s_waitcnt lgkmcnt(0)")
    stamp_init(a); stamp_rt(a, 0); stamp(a, 1)
    srd(a, RKV, P_WS, KV_SIZE, KV_OFF)
    srd(a, RX, P_X, S*D*2)
    srd(a, RW, P_WQ, D*D*2)
    a("s_lshl_b32 s%d, s%d, 10" % (SXW, S_WAVE))
    for kc in range(2):
        a("s_mov_b32 s%d, %d" % (ST3, kc))
        a("s_mov_b32 s%d, %d" % (SDST, ST0 + kc*ST_STR))
        qproj_dma_prep(a)
        for g in qproj_dma_pieces():
            for x in g: a(x)
    if not EXP.get("notouch"):
        a("s_lshr_b32 s%d, s2, 3" % ST1)
        a("s_mul_i32 s%d, s%d, 20" % (ST1, ST1))
        a("s_mul_i32 s%d, s%d, 5" % (ST2, S_WAVE))
        a("s_add_u32 s%d, s%d, s%d" % (ST1, ST1, ST2))
        a("v_mul_u32_u24 v20, 6554, v%d" % VL)
        a("v_lshrrev_b32 v20, 16, v20")
        a("v_mul_u32_u24 v21, 10, v20")
        a("v_sub_u32 v21, v%d, v21" % VL)
        a("v_lshlrev_b32 v21, 7, v21")
        a("v_add_u32 v22, s%d, v20" % ST1)
        a("v_mul_u32_u24 v22, 1280, v22")
        a("v_add_u32 v22, v22, v21")
        a("s_mov_b32 exec_hi, 0x3ffff")
        a("buffer_load_dword v255, v22, s[%d:%d], 0 offen" % (RW, RW+3))
        a("s_lshl_b32 s%d, s%d, 6" % (ST1, STG))
        a("s_lshl_b32 s%d, s%d, 3" % (ST2, SHG))
        a("s_add_u32 s%d, s%d, s%d" % (ST1, ST1, ST2))
        a("s_lshl_b32 s%d, s%d, 1" % (ST2, S_WAVE))
        a("s_add_u32 s%d, s%d, s%d" % (ST1, ST1, ST2))
        a("s_mov_b32 exec_hi, 0")
        a("s_mov_b32 exec_lo, 0xfffff")
        a("v_add_u32 v22, s%d, v20" % ST1)
        a("v_mul_u32_u24 v22, 1280, v22")
        a("v_add_u32 v22, v22, v21")
        a("buffer_load_dword v255, v22, s[%d:%d], 0 offen" % (RX, RX+3))
        a("s_mov_b64 exec, -1")
    a("s_setprio %d" % int(_os.environ.get("APRIO0B", "0")))
    a("v_lshrrev_b32 v20, 4, v%d" % VT)
    a("s_lshl_b32 s%d, s%d, 1" % (ST1, STL))
    a("v_add_u32 v20, s%d, v20" % ST1)
    a("v_lshlrev_b32 v20, 10, v20")
    a("v_and_b32 v21, 15, v%d" % VT)
    a("v_lshl_add_u32 v20, v21, 6, v20")
    a("v_bfe_u32 v21, v%d, 2, 2" % VT)
    a("v_xor_b32 v21, v21, v%d" % VH)
    a("v_lshl_add_u32 v20, v21, 4, v20")
    a("v_add_u32 v8, %d, v20" % ST0)
    a("v_xor_b32 v9, 32, v8")
    a("s_cmp_eq_u32 s%d, 0" % STL)
    a("s_movk_i32 s%d, -2048" % ST2)
    a("s_cselect_b32 s%d, 2048, s%d" % (ST1, ST2))
    a("v_add_u32 v10, s%d, v8" % ST1)
    a("v_add_u32 v11, s%d, v9" % ST1)
    dq_of_mq(a, VL, 23, 21, 22)
    a("v_bfe_u32 v20, v%d, 2, 2" % VL)
    a("v_lshl_add_u32 v20, v%d, 3, v20" % VH)
    a("v_mul_u32_u24 v20, 160, v20")
    a("v_lshl_add_u32 v20, v23, 3, v20")
    a("s_mul_i32 s%d, s%d, 40" % (ST1, S_WAVE))
    a("s_add_u32 s%d, s%d, %d" % (ST1, ST1, ST0 + 8192))
    a("v_add_u32 v12, s%d, v20" % ST1)
    for r in range(16, 20): a("v_mov_b32 v%d, 0x3f803f80" % r)
    for r in list(range(48, 80)) + list(range(96, 112)): a("v_mov_b32 v%d, 0" % r)
    a("s_mov_b32 s%d, 0x3f803f80" % SONES)
    a("s_mov_b32 s%d, 0" % SKC)
    a("s_mov_b32 s%d, 0" % SSTG)
    kv_addr_init(a)
    for r in range(CB[0], CB[0]+32): a("v_mov_b32 v%d, 0" % r)
    FS = (20, 32, 208, 220)
    LT = a.uid("QP_top")
    stamp(a, 2)
    stamp(a, 3)
    ntouch = 0 if EXP.get("notouch") else 2
    def reads(ks, b):
        if EXP.get("qnoread"): return
        seg, k1 = ks >> 1, ks & 1
        a("ds_read_b64_tr_b16 v[%d:%d], v12 offset:%d" % (b, b+1, ks*2560))
        a("ds_read_b64_tr_b16 v[%d:%d], v12 offset:%d" % (b+2, b+3, ks*2560+640))
        a("ds_read_b128 v[%d:%d], v%d offset:%d" % (b+4, b+7, 8+k1, seg*4096))
        a("ds_read_b128 v[%d:%d], v%d offset:%d" % (b+8, b+11, 10+k1, seg*4096))
    a("s_waitcnt lgkmcnt(0)")
    stamp_init(a); stamp_rt(a, 0); stamp(a, 1)
    srd(a, RKV, P_WS, KV_SIZE, KV_OFF)
    srd(a, RX, P_X, S*D*2)
    srd(a, RW, P_WQ, D*D*2)
    a("s_lshl_b32 s%d, s%d, 10" % (SXW, S_WAVE))
    for kc in range(2):
        a("s_mov_b32 s%d, %d" % (ST3, kc))
        a("s_mov_b32 s%d, %d" % (SDST, ST0 + kc*ST_STR))
        qproj_dma_prep(a)
        for g in qproj_dma_pieces():
            for x in g: a(x)
    if not EXP.get("notouch"):
        a("s_lshr_b32 s%d, s2, 3" % ST1)
        a("s_mul_i32 s%d, s%d, 20" % (ST1, ST1))
        a("s_mul_i32 s%d, s%d, 5" % (ST2, S_WAVE))
        a("s_add_u32 s%d, s%d, s%d" % (ST1, ST1, ST2))
        a("v_mul_u32_u24 v20, 6554, v%d" % VL)
        a("v_lshrrev_b32 v20, 16, v20")
        a("v_mul_u32_u24 v21, 10, v20")
        a("v_sub_u32 v21, v%d, v21" % VL)
        a("v_lshlrev_b32 v21, 7, v21")
        a("v_add_u32 v22, s%d, v20" % ST1)
        a("v_mul_u32_u24 v22, 1280, v22")
        a("v_add_u32 v22, v22, v21")
        a("s_mov_b32 exec_hi, 0x3ffff")
        a("buffer_load_dword v255, v22, s[%d:%d], 0 offen" % (RW, RW+3))
        a("s_lshl_b32 s%d, s%d, 6" % (ST1, STG))
        a("s_lshl_b32 s%d, s%d, 3" % (ST2, SHG))
        a("s_add_u32 s%d, s%d, s%d" % (ST1, ST1, ST2))
        a("s_lshl_b32 s%d, s%d, 1" % (ST2, S_WAVE))
        a("s_add_u32 s%d, s%d, s%d" % (ST1, ST1, ST2))
        a("s_mov_b32 exec_hi, 0")
        a("s_mov_b32 exec_lo, 0xfffff")
        a("v_add_u32 v22, s%d, v20" % ST1)
        a("v_mul_u32_u24 v22, 1280, v22")
        a("v_add_u32 v22, v22, v21")
        a("buffer_load_dword v255, v22, s[%d:%d], 0 offen" % (RX, RX+3))
        a("s_mov_b64 exec, -1")
    FS = (20, 32, 208, 220)
    def q_iter():
        a("s_add_u32 s%d, s%d, 2" % (ST3, SKC))
        a("s_add_u32 s%d, s%d, 2" % (SDST, SSTG))
        a("s_and_b32 s%d, s%d, 3" % (SDST, SDST))
        a("s_mul_i32 s%d, s%d, %d" % (SDST, SDST, ST_STR))
        qproj_dma_prep(a)
        pieces = qproj_dma_pieces()
        if EXP.get("qnodma"): pieces = [[] for _ in pieces]
        for ks in range(4):
            b = FS[ks]
            if ks == 2:
                a("s_waitcnt vmcnt(5)")
                a("s_barrier")
                a("s_cmp_eq_u32 s%d, 3" % SSTG)
                a("s_mov_b32 s%d, %d" % (SDEL, ST_STR))
                a("s_cselect_b32 s%d, %d, s%d" % (SDEL, -3*ST_STR, SDEL))
                for r in range(8, 13): a("v_add_u32 v%d, s%d, v%d" % (r, SDEL, r))
                a("s_add_u32 s%d, s%d, 1" % (SSTG, SSTG))
                a("s_and_b32 s%d, s%d, 3" % (SSTG, SSTG))
                a("s_add_u32 s%d, s%d, 1" % (SKC, SKC))
            reads((ks+2) & 3, FS[(ks+2) & 3])
            a("s_waitcnt lgkmcnt(8)")
            pat = {0: [0, 1, None], 1: [2, 3, 4], 2: [None]*3, 3: [None]*3}[ks]
            ms = [mfma(48, b, b+4, 48), mfma(64, b, b+8, 64), mfma(96, b, 16, 96)]
            for i in range(3):
                if not EXP.get("qnomfma") and not (i == 2 and EXP.get("qnocs")): a(ms[i])
                if pat[i] is not None:
                    for x in pieces[pat[i]]: a(x)
    a("s_waitcnt vmcnt(%d)" % (5 + ntouch))
    a("s_barrier")
    reads(0, FS[0]); reads(1, FS[1])
    a.label(LT)
    q_iter(); q_iter()
    a("s_cmp_lt_u32 s%d, 10" % SKC)
    a("s_cbranch_scc1 %s" % LT)
    if "q_tail" in hooks: hooks["q_tail"](a)
    a("s_waitcnt vmcnt(0) lgkmcnt(0)")
    stamp(a, 4)
    a("s_barrier")
    if "after_qproj_barrier" in hooks: hooks["after_qproj_barrier"](a)
    a("s_waitcnt vmcnt(12)")
    c = f2u(math.log2(math.e) / math.sqrt(20.0))
    a("v_mul_f32 v15, 0x%x, v15" % c)
    a("v_mul_f32 v19, 0x%x, v19" % c)
    for t, (dacc, mean, rc) in enumerate(((48, 14, 15), (64, 18, 19))):
        for r in range(12):
            a("v_fma_f32 v%d, -v%d, v%d, v%d" % (dacc+r, mean, 96+r, dacc+r))
        for r in range(12):
            a("v_mul_f32 v%d, v%d, v%d" % (dacc+r, rc, dacc+r))
        for i in range(4):
            a("v_cvt_pk_bf16_f32 v%d, v%d, v%d" % (Q1[t]+i, dacc+2*i, dacc+2*i+1))
        for i in range(2):
            a("v_cvt_pk_bf16_f32 v%d, v%d, v%d" % (Q2[t]+i, dacc+8+2*i, dacc+9+2*i))
    a("v_cmp_gt_u32 vcc, 32, v%d" % VL)
    a("s_nop 1")
    for t in range(2):
        for i in range(2):
            a("v_cndmask_b32 v%d, 0, v%d, vcc" % (Q2[t]+i, Q2[t]+i))

def kv_addr_init(a):
    a("v_lshlrev_b32 v%d, 4, v%d" % (KAC, VL))
    a("v_lshlrev_b32 v%d, 3, v%d" % (K2C, VT))
    a("v_add_u32 v%d, 8192, v%d" % (K2C, K2C))
    a("v_min_u32 v20, 21, v%d" % VT)
    a("v_lshlrev_b32 v20, 4, v20")
    a("v_mul_u32_u24 v21, 384, v%d" % VH)
    a("v_add_u32 v20, v20, v21")
    a("v_add_u32 v%d, 10240, v20" % VAC)
    for c, n in ((KAC, KAN), (K2C, K2N), (VAC, VAN)):
        a("v_add_u32 v%d, %d, v%d" % (n, KVS1, c))
    a("s_mul_i32 s%d, s%d, 6144" % (ST1, S_WAVE))
    a("v_lshlrev_b32 v%d, 4, v%d" % (VKVD, VL))
    a("v_add_u32 v%d, s%d, v%d" % (VKVD, ST1, VKVD))

def k2reg(kt): return K2[(kt >> 1) & 1] + 2*(kt & 1)

def gen_main(a, hooks):
    a("; ---------- attention main ----------")
    LPASS = a.uid("AT_pass"); LLOOP = a.uid("AT_loop")
    a.label(LPASS)
    for r in list(range(OB[0], OB[0]+32)) + list(range(TB, TB+8)) + list(range(PB, PB+8)) + list(range(V2[1], V2[1]+4)):
        a("v_mov_b32 v%d, 0" % r)
    a("s_waitcnt vmcnt(6)")
    a("s_barrier")
    a("ds_read_b128 v[%d:%d], v%d" % (K1[0], K1[0]+3, KAC))
    a("ds_read2_b64 v[%d:%d], v%d offset0:0 offset1:32" % (K2[0], K2[0]+3, K2C))
    a("ds_read_b128 v[%d:%d], v%d" % (V1[0], V1[0]+3, VAC))
    a("ds_read_b128 v[%d:%d], v%d offset:768" % (V2[0], V2[0]+3, VAC))
    a("s_waitcnt lgkmcnt(2)")
    a(mfma(SB[0], K1[0], Q1[0], CB[0]))
    a(mfma8(SB[0], k2reg(0), Q2[0], SB[0]))
    a("s_mov_b32 s%d, 0" % SC)
    a("s_waitcnt lgkmcnt(0)")
    stamp(a, 5)
    a.nop(16)
    dmag = kv_dma(a, SKVD, SKVO, hooks.get('ld', ''))
    a.label(LLOOP)
    for n in range(16):
        kt, t = n >> 1, n & 1
        n1 = n + 1; kt1, t1 = n1 >> 1, n1 & 1
        tp = (n - 1) & 1; ktp = (n - 1) >> 1
        ms = [mfma(SB[t1], K1[kt1 & 1], Q1[t1], CB[t1]),
              mfma(OB[tp], V2[ktp & 1], PB+4, OB[tp]),
              mfma8(SB[t1], k2reg(kt1 & 7), Q2[t1], SB[t1]),
              mfma(OB[t], V1[kt & 1], PB, OB[t])]
        for q in range(4):
            a(ms[q])
            extra = []
            nk = kt + 1
            if t == 0 and q == 0:
                extra.append("ds_read_b128 v[%d:%d], v%d offset:%d" % (K1[nk&1], K1[nk&1]+3, KAC if nk < 8 else KAN, (nk & 7)*1024))
            if t == 0 and q == 2:
                extra.append("ds_read_b128 v[%d:%d], v%d offset:%d" % (V1[nk&1], V1[nk&1]+3, VAC if nk < 8 else VAN, (nk & 7)*1536))
            if t == 1 and q == 0:
                extra.append("ds_read_b128 v[%d:%d], v%d offset:%d" % (V2[nk&1], V2[nk&1]+3, VAC if nk < 8 else VAN, (nk & 7)*1536 + 768))
            k2pos = (t == 1 and q == 2 and kt % 2 == 0 and kt != 6) or (n == 14 and q == 1)
            if k2pos:
                pk = (kt + 2) if n != 14 else 8
                b = K2[(pk >> 1) & 1]
                p = (pk & 7) >> 1
                extra.append("ds_read2_b64 v[%d:%d], v%d offset0:%d offset1:%d" % (b, b+3, K2C if pk < 8 else K2N, p*64, p*64+32))
            if q == 3:
                if n == 13:
                    if PROFILE:
                        extra += ["s_memtime s[78:79]", "s_waitcnt lgkmcnt(0)", "s_mov_b32 s97, s78",
                                  "s_waitcnt vmcnt(0)", "s_memtime s[78:79]", "s_waitcnt lgkmcnt(0)", "s_sub_u32 s97, s78, s97", "s_add_u32 s91, s91, s97", "s_mov_b32 s97, s78",
                                  "s_barrier", "s_memtime s[78:79]", "s_waitcnt lgkmcnt(0)", "s_sub_u32 s97, s78, s97", "s_add_u32 s92, s92, s97"]
                    else:
                        extra += ["s_waitcnt vmcnt(0) lgkmcnt(0)", "s_barrier"]
                else: extra.append("s_waitcnt lgkmcnt(1)")
            di = (n - 14)*4 + q if n >= 14 else -1
            if 1 <= di <= 6 and di != 1 or (n == 14 and q == 0) or False:
                pass
            dma_at = {(14,0): 0, (14,2): 1, (14,3): 2, (15,1): 3, (15,2): 4, (15,3): 5}
            if (n, q) in dma_at:
                extra += dmag[dma_at[(n, q)]]
            if n == 15 and q == 3:
                extra += ["s_xor_b32 s%d, s%d, %d" % (SKVD, SKVD, KVS1), "s_add_u32 s%d, s%d, %d" % (SKVO, SKVO, KV_CHUNK)]
            for x in extra: a(x)
            Tc = TB + 4*(q & 1); Tp = TB + 4*((q+1) & 1)
            pd = PB + (2*q + 6) % 8
            es = ["v_exp_f32 v%d, v%d" % (Tc+e, SB[t]+4*q+e) for e in range(4)]
            cs = ["v_cvt_pk_bf16_f32 v%d, v%d, v%d" % (pd, Tp, Tp+1), "v_cvt_pk_bf16_f32 v%d, v%d, v%d" % (pd+1, Tp+2, Tp+3)]
            for x in (es[0], es[1], cs[0], cs[1], es[2], es[3]): a(x)
    for c, nn in ((KAC, KAN), (K2C, K2N), (VAC, VAN)):
        a("v_xor_b32 v%d, %d, v%d" % (c, KVS1, c))
        a("v_xor_b32 v%d, %d, v%d" % (nn, KVS1, nn))
    a("s_add_u32 s%d, s%d, 1" % (SC, SC))
    a("s_cmp_lt_u32 s%d, 8" % SC)
    a("s_cbranch_scc1 %s" % LLOOP)
    stamp(a, 6)
    a("v_cvt_pk_bf16_f32 v%d, v%d, v%d" % (PB+6, TB+4, TB+5))
    a("v_cvt_pk_bf16_f32 v%d, v%d, v%d" % (PB+7, TB+6, TB+7))
    a("s_nop 1")
    a(mfma(OB[1], V2[1], PB+4, OB[1]))
    a.nop(18)
    return LPASS

def gen_att(a, hooks=None):
    hooks = hooks or {}
    a("; ================= A-WG =================")
    a("s_setprio %d" % int(_os.environ.get("APRIO0", "3")))
    a("s_and_b32 s%d, s2, 7" % STG)
    a("s_lshr_b32 s%d, s2, 3" % ST1)
    a("s_and_b32 s%d, s%d, 7" % (SHG, ST1))
    a("s_lshr_b32 s%d, s%d, 3" % (ST1, ST1))
    a("s_lshl_b32 s%d, s%d, 3" % (ST1, ST1))
    a("s_add_u32 s%d, s%d, s%d" % (STG, STG, ST1))
    wave_lane(a, VL)
    a("v_lshrrev_b32 v%d, 5, v%d" % (VH, VL))
    a("v_and_b32 v%d, 31, v%d" % (VT, VL))
    a("s_nop 2")
    a("s_lshl_b32 s%d, s%d, 2" % (SHEAD, SHG))
    a("s_add_u32 s%d, s%d, s%d" % (SHEAD, SHEAD, S_WAVE))
    a("s_and_b32 s%d, s%d, 1" % (STL, S_WAVE))
    a("s_lshl_b32 s%d, s%d, 1" % (STTA, STG))
    a("s_add_u32 s%d, s%d, 1" % (STTB, STTA))
    a("s_sub_u32 s%d, s%d, s%d" % (STTB, STTB, STL))
    a("s_add_u32 s%d, s%d, s%d" % (STTA, STTA, STL))
    def after_q(a):
        if "wait_kv" in hooks: hooks["wait_kv"](a)
        ld = hooks.get("ld", "")
        srd(a, RO, P_WS, STAT_SIZE, STAT_OFF)
        a("v_lshlrev_b32 v20, 3, v%d" % VT)
        a("s_lshl_b32 s%d, s%d, 8" % (ST1, STTA))
        a("s_lshl_b32 s%d, s%d, 8" % (ST2, STTB))
        a("buffer_load_dwordx2 v[14:15], v20, s[%d:%d], s%d offen%s" % (RO, RO+3, ST1, ld))
        a("buffer_load_dwordx2 v[18:19], v20, s[%d:%d], s%d offen%s" % (RO, RO+3, ST2, ld))
        for (dst, off) in ((KVS0, 0), (KVS1, KV_CHUNK)):
            a("s_mov_b32 s%d, %d" % (SKVD, dst))
            a("s_mov_b32 s%d, %d" % (SKVO, off))
            for g in kv_dma(a, SKVD, SKVO, ld):
                for x in g: a(x)
        a("s_mov_b32 s%d, %d" % (SKVD, KVS0))
        a("s_mov_b32 s%d, %d" % (SKVO, 2*KV_CHUNK))
    h2 = dict(hooks); h2["after_qproj_barrier"] = after_q
    gen_qproj(a, h2)
    a("s_mov_b32 s%d, 0" % SPASS)
    a("s_setprio %d" % int(_os.environ.get("APRIO1", "0")))
    LPASS = gen_main(a, hooks)
    LOK = a.uid("AT_ok"); LMAXC = a.uid("AT_mc"); LMAXT = a.uid("AT_mt"); LNC = a.uid("AT_nochk")
    OL = 57344
    for t in range(2):
        l = 20 + t
        a("v_mov_b32 v22, v%d" % (OB[t]+8))
        a("v_mov_b32 v%d, v%d" % (l, OB[t]+8))
        a("s_nop 1")
        a("v_permlane32_swap_b32 v22, v%d" % l)
    a("s_mov_b32 s%d, 0" % ST1)
    a("s_cmp_lg_u32 s%d, 0" % SPASS)
    a("s_cbranch_scc1 %s" % LNC)
    a("v_mov_b32 v24, 0")
    a("v_mov_b32 v25, 0")
    a("v_mov_b32 v26, 0")
    for t in range(2):
        if EXP.get("nopkfma"):
            for r in range(12): a("v_fma_f32 v24, v%d, 0, v24" % (OB[t]+r))
            continue
        for r in range(0, 12, 2):
            a("v_pk_fma_f32 v[24:25], v[%d:%d], v[26:27], v[24:25] op_sel_hi:[1,0,1]" % (OB[t]+r, OB[t]+r+1))
    a("v_min_f32 v23, v20, v21")
    a("v_max_f32 v22, v20, v21")
    a("v_add_f32 v24, v24, v25")
    a("v_add_f32 v24, v24, v22")
    a("v_cmp_nle_f32 vcc, 0x21800000, v23")
    a("s_mov_b32 s%d, 0x71800000" % ST2)
    a("v_cmp_nge_f32 s[74:75], s%d, v24" % ST2)
    a("s_nop 1")
    a("s_or_b64 vcc, vcc, s[74:75]")
    a("s_cmp_lg_u64 vcc, 0")
    a("s_cselect_b32 s%d, 1, 0" % ST1)
    a.label(LNC)
    a("v_rcp_f32 v22, v20")
    a("v_rcp_f32 v23, v21")
    a("v_mov_b32 v24, s%d" % ST1)
    a("s_lshl_b32 s%d, s%d, 2" % (ST2, S_WAVE))
    a("s_add_u32 s%d, s%d, %d" % (ST2, ST2, EXF))
    a("v_mov_b32 v25, s%d" % ST2)
    a("ds_write_b32 v25, v24")
    a("v_lshlrev_b32 v26, 3, v%d" % VT)
    a("v_lshl_add_u32 v26, v%d, 8, v26" % VH)
    a("s_mul_i32 s%d, s%d, 1280" % (ST2, S_WAVE))
    a("s_mul_i32 s%d, s%d, 5120" % (ST3, STL))
    a("s_add_u32 s%d, s%d, s%d" % (ST2, ST2, ST3))
    a("s_add_u32 s%d, s%d, %d" % (ST2, ST2, OL))
    a("v_add_u32 v27, s%d, v26" % ST2)
    a("s_mul_i32 s%d, s%d, -10240" % (ST3, STL))
    a("s_add_u32 s%d, s%d, 5120" % (ST3, ST3))
    a("v_add_u32 v28, s%d, v27" % ST3)
    for t in range(2):
        for r in range(12): a("v_mul_f32 v%d, v%d, v%d" % (OB[t]+r, 22+t, OB[t]+r))
        b = 32 + 8*t
        for i in range(6):
            a("v_cvt_pk_bf16_f32 v%d, v%d, v%d" % (b+i, OB[t]+2*i, OB[t]+2*i+1))
        a("ds_write_b64 v%d, v[%d:%d]" % (27+t, b, b+1))
        a("ds_write_b64 v%d, v[%d:%d] offset:512" % (27+t, b+2, b+3))
        a("s_mov_b32 exec_hi, 0")
        a("ds_write_b64 v%d, v[%d:%d] offset:1024" % (27+t, b+4, b+5))
        a("s_mov_b64 exec, -1")
    a("s_waitcnt lgkmcnt(0)")
    a("s_barrier")
    a("v_mov_b32 v23, %d" % EXF)
    a("ds_read_b128 v[48:51], v23")
    a("v_lshlrev_b32 v26, 3, v%d" % VT)
    a("v_lshl_add_u32 v26, v%d, 9, v26" % VH)
    a("v_add_u32 v26, %d, v26" % OL)
    for m in range(3):
        a("s_add_u32 s%d, s%d, %d" % (ST1, S_WAVE, 4*m))
        a("s_cmp_ge_u32 s%d, 5" % ST1)
        a("s_cselect_b32 s%d, 1, 0" % ST2)
        a("s_mul_i32 s%d, s%d, 5" % (ST3, ST2))
        a("s_sub_u32 s%d, s%d, s%d" % (ST3, ST1, ST3))
        a("s_mul_i32 s74, s%d, 5120" % ST2)
        a("s_lshl_b32 s75, s%d, 10" % ST3)
        a("s_add_u32 s74, s74, s75")
        a("v_add_u32 v27, s74, v26")
        a("ds_read2_b64 v[%d:%d], v27 offset0:0 offset1:32" % (32+4*m, 35+4*m))
        a("s_lshl_b32 s74, s%d, 1" % STG)
        a("s_add_u32 s74, s74, s%d" % ST2)
        a("s_mul_i32 s74, s74, 40")
        a("s_mul_i32 s75, s%d, 5" % SHG)
        a("s_add_u32 s74, s74, s75")
        a("s_add_u32 s74, s74, s%d" % ST3)
        a("s_lshl_b32 s%d, s74, 10" % (98+m))
        if m == 2:
            a("s_cmp_lt_u32 s%d, 10" % ST1)
            a("s_cselect_b32 s100, s100, 0x40000000")
    a("s_waitcnt lgkmcnt(0)")
    a("v_or_b32 v48, v48, v49")
    a("v_or3_b32 v48, v48, v50, v51")
    a("s_nop 0")
    a("v_readfirstlane_b32 s%d, v48" % ST1)
    a("s_nop 3")
    a("s_cmp_eq_u32 s%d, 0" % ST1)
    a("s_cbranch_scc1 %s" % LOK)
    a("v_mov_b32 v20, 0xff800000")
    a("v_mov_b32 v21, 0xff800000")
    a("s_mov_b32 s%d, 0" % SC)
    a.label(LMAXC)
    a("s_barrier")
    a("s_mov_b32 s%d, %d" % (SKVD, KVS0))
    a("s_mul_i32 s%d, s%d, %d" % (SKVO, SC, KV_CHUNK))
    for g in kv_dma(a, SKVD, SKVO, hooks.get('ld', '')):
        for x in g: a(x)
    a("s_waitcnt vmcnt(0)")
    a("s_barrier")
    a("v_mov_b32 v22, v%d" % KAC)
    a("v_mov_b32 v23, v%d" % K2C)
    a("s_mov_b32 s%d, 0" % SKC)
    a.label(LMAXT)
    a("ds_read_b128 v[%d:%d], v22" % (K1[0], K1[0]+3))
    a("ds_read_b64 v[%d:%d], v23" % (K2[0], K2[0]+1))
    a("s_waitcnt lgkmcnt(0)")
    for t in range(2):
        a(mfma(SB[t], K1[0], Q1[t], None))
        a(mfma8(SB[t], K2[0], Q2[t], SB[t]))
    a.nop(18)
    for t in range(2):
        for r in range(0, 16, 2):
            a("v_max3_f32 v%d, v%d, v%d, v%d" % (20+t, SB[t]+r, SB[t]+r+1, 20+t))
    a("v_add_u32 v22, 1024, v22")
    a("v_add_u32 v23, 256, v23")
    a("s_add_u32 s%d, s%d, 1" % (SKC, SKC))
    a("s_cmp_lt_u32 s%d, 8" % SKC)
    a("s_cbranch_scc1 %s" % LMAXT)
    a("s_add_u32 s%d, s%d, 1" % (SC, SC))
    a("s_cmp_lt_u32 s%d, 8" % SC)
    a("s_cbranch_scc1 %s" % LMAXC)
    for t in range(2):
        a("v_mov_b32 v22, v%d" % (20+t))
        a("v_mov_b32 v23, v%d" % (20+t))
        a("s_nop 1")
        a("v_permlane32_swap_b32 v22, v23")
        a("s_nop 1")
        a("v_max_f32 v22, v22, v23")
        a("v_sub_f32 v22, 0, v22")
        for r in range(16): a("v_mov_b32 v%d, v22" % (CB[t]+r))
    a("s_barrier")
    a("s_mov_b32 s%d, %d" % (SKVD, KVS0))
    a("s_mov_b32 s%d, 0" % SKVO)
    for g in kv_dma(a, SKVD, SKVO, hooks.get('ld', '')):
        for x in g: a(x)
    a("s_mov_b32 s%d, %d" % (SKVD, KVS1))
    a("s_mov_b32 s%d, %d" % (SKVO, KV_CHUNK))
    for g in kv_dma(a, SKVD, SKVO, hooks.get('ld', '')):
        for x in g: a(x)
    a("s_mov_b32 s%d, %d" % (SKVD, KVS0))
    a("s_mov_b32 s%d, %d" % (SKVO, 2*KV_CHUNK))
    a("s_mov_b32 s%d, 1" % SPASS)
    a("s_branch %s" % LPASS)
    a.label(LOK)
    srd(a, RO, P_WS, OQ_SIZE, OQ_OFF)
    a("v_lshlrev_b32 v%d, 4, v%d" % (VOST, VL))
    st = hooks.get("st", "")
    for m in range(3):
        a("buffer_store_dwordx4 v[%d:%d], v%d, s[%d:%d], s%d offen%s" % (32+4*m, 35+4*m, VOST, RO, RO+3, 98+m, st))
    if "o_done" in hooks: hooks["o_done"](a)
    stamp(a, 7)
    a("s_waitcnt vmcnt(0)") if PROFILE else None
    stamp(a, 8); stamp_rt(a, 9)
    stamp_flush(a)
```

```python
from common import *
import common
RW2, RU, RWO, RO, RXO = R0, R1, R2, R3, R4
SSG, SDG, ST1, ST2, ST3, SCH, SWOFF, SUOFF, SRING = 35, 36, 60, 61, 62, 63, 64, 65, 66
ACC = 128
def acc(dt, st): return ACC + 32*dt + 16*st
UB = 32; FB = 112; OBF = 32
WREG = 20480
import os
NS = int(os.environ.get('M2NS', '2'))

def gen_m2(a, hooks=None):
    hooks = hooks or {}
    LEND = a.uid("M2_end")
    a("; ================= M2 =================")
    a("s_and_b32 s%d, s%d, 7" % (ST1, S_J))
    a("s_lshr_b32 s%d, s%d, 3" % (ST2, S_J))
    a("s_cmp_ge_u32 s%d, 28" % ST2)
    a("s_cbranch_scc1 %s" % LEND)
    a("s_mul_hi_u32 s%d, s%d, 0x24924925" % (ST3, ST2))
    a("s_mul_i32 s%d, s%d, 7" % (SDG, ST3))
    a("s_sub_u32 s%d, s%d, s%d" % (SDG, ST2, SDG))
    a("s_lshl_b32 s%d, s%d, 3" % (ST3, ST3))
    a("s_add_u32 s%d, s%d, s%d" % (SSG, ST1, ST3))
    wave_lane(a, 1)
    a("v_lshrrev_b32 v8, 5, v1")
    a("v_and_b32 v9, 31, v1")
    a("s_mul_i32 s%d, s%d, %d" % (SRING, S_WAVE, WREG))
    srd(a, RW2, P_W2, F*S*2)
    srd(a, RU, P_WS, UF_SIZE, UF_OFF)
    srd(a, RWO, P_WO, D*D*2)
    srd(a, RXO, P_X, S*D*2)
    a("s_lshl_b32 s%d, s%d, 6" % (ST1, SSG))
    a("v_add_u32 v16, s%d, v9" % ST1)
    a("v_lshlrev_b32 v30, 1, v16")
    a("s_movk_i32 s%d, 1280" % ST2)
    a("v_mul_lo_u32 v16, v16, s%d" % ST2)
    a("s_mul_i32 s%d, s%d, 192" % (ST1, SDG))
    a("s_lshl_b32 s%d, s%d, 4" % (ST2, S_WAVE))
    a("s_add_u32 s%d, s%d, s%d" % (ST1, ST1, ST2))
    a("v_lshl_add_u32 v16, v8, 3, v16")
    a("v_add_u32 v16, s%d, v16" % ST1)
    a("v_add_u32 v17, %d, v16" % (32*1280))
    for dt in range(3):
        for st in range(2):
            b = 18 + 4*dt + 2*st
            a("buffer_load_dwordx2 v[%d:%d], v%d, s[%d:%d], 0 offen offset:%d" % (b, b+1, 16+st, RXO, RXO+3, 64*dt))
    srd(a, RXO, P_B2, S*2)
    a("buffer_load_ushort v31, v30, s[%d:%d], 0 offen offset:64" % (RXO, RXO+3))
    a("buffer_load_ushort v30, v30, s[%d:%d], 0 offen" % (RXO, RXO+3))
    a("v_lshrrev_b32 v2, 3, v1")
    a("s_mul_i32 s%d, s%d, 384" % (ST1, S_WAVE))
    a("v_add_u32 v2, s%d, v2" % ST1)
    a("v_lshlrev_b32 v2, 12, v2")
    a("v_bfe_u32 v3, v1, 4, 1")
    a("v_lshlrev_b32 v3, 2, v3")
    a("v_and_b32 v4, 7, v1")
    a("v_xor_b32 v3, v3, v4")
    a("v_lshl_add_u32 v2, v3, 4, v2")
    a("s_lshl_b32 s%d, s%d, 7" % (ST1, SSG))
    a("v_add_u32 v2, s%d, v2" % ST1)
    a("s_lshl_b32 s%d, s%d, 3" % (ST1, S_WAVE))
    a("v_add_u32 v3, s%d, v9" % ST1)
    a("v_and_b32 v3, 31, v3")
    a("v_lshl_add_u32 v3, v8, 5, v3")
    a("v_lshlrev_b32 v10, 4, v3")
    a("s_mul_i32 s%d, s%d, 3" % (ST1, SDG))
    a("s_mul_i32 s%d, s%d, 24" % (ST2, S_WAVE))
    for dt in range(3):
        a("s_add_u32 s%d, s%d, %d" % (ST3, ST1, dt))
        a("s_min_u32 s%d, s%d, 19" % (ST3, ST3))
        a("s_mul_i32 s%d, s%d, 96" % (ST3, ST3))
        a("s_add_u32 s%d, s%d, s%d" % (ST3, ST3, ST2))
        a("s_lshl_b32 s%d, s%d, 10" % (ST3, ST3))
        a("v_add_u32 v%d, s%d, v10" % (3+dt, ST3))
    a("v_bfe_u32 v11, v1, 2, 2")
    a("v_lshl_add_u32 v10, v8, 2, v11")
    a("v_lshlrev_b32 v10, 7, v10")
    a("v_bfe_u32 v12, v1, 4, 1")
    a("v_bfe_u32 v13, v1, 1, 1")
    a("v_lshl_add_u32 v12, v12, 1, v13")
    a("v_lshrrev_b32 v13, 1, v11")
    a("v_lshlrev_b32 v13, 2, v13")
    a("v_xor_b32 v12, v12, v13")
    a("v_lshl_add_u32 v10, v12, 4, v10")
    a("v_and_b32 v12, 1, v1")
    a("v_lshl_add_u32 v10, v12, 3, v10")
    a("v_add_u32 v6, s%d, v10" % SRING)
    a("v_xor_b32 v7, 64, v6")
    a("v_lshl_add_u32 v10, v8, 3, v11")
    a("v_mul_u32_u24 v10, 192, v10")
    a("v_and_b32 v12, 3, v1")
    a("v_bfe_u32 v13, v1, 4, 1")
    a("v_lshl_add_u32 v12, v13, 2, v12")
    a("s_lshl_b32 s%d, s%d, 1" % (ST1, S_WAVE))
    a("v_add_u32 v12, s%d, v12" % ST1)
    a("v_and_b32 v12, 7, v12")
    a("v_lshl_add_u32 v10, v12, 3, v10")
    a("v_add_u32 v13, s%d, v10" % SRING)
    a("s_mul_i32 s%d, s%d, 160" % (ST1, S_WAVE))
    a("s_mul_i32 s%d, s%d, 192" % (ST2, SDG))
    a("s_movk_i32 s%d, 1280" % ST3)
    for m in range(3):
        a("v_add_u32 v112, %d, v1" % (64*m))
        a("v_mul_u32_u24 v113, 5462, v112")
        a("v_lshrrev_b32 v113, 16, v113")
        a("v_mul_u32_u24 v114, 12, v113")
        a("v_sub_u32 v114, v112, v114")
        a("v_add_u32 v113, s%d, v113" % ST1)
        a("v_mul_lo_u32 v113, v113, s%d" % ST3)
        a("v_lshl_add_u32 v113, v114, 4, v113")
        a("v_add_u32 v%d, s%d, v113" % (10+m, ST2))
    a("v_lshlrev_b32 v112, 4, v1")
    a("s_lshl_b32 s%d, s%d, 1" % (ST1, SSG))
    a("s_mul_i32 s%d, s%d, 40" % (ST1, ST1))
    a("s_mul_i32 s%d, s%d, 10" % (ST2, S_WAVE))
    a("s_add_u32 s%d, s%d, s%d" % (ST1, ST1, ST2))
    a("s_lshl_b32 s%d, s%d, 10" % (ST1, ST1))
    a("v_add_u32 v14, s%d, v112" % ST1)
    a("v_add_u32 v15, %d, v14" % (40*1024))
    ld = hooks.get("ld", "")
    def w_piece(slot, m):
        return ["s_add_u32 m0, s%d, %d" % (SRING, slot*4096 + m*1024),
                "s_add_u32 s%d, s%d, %d" % (ST1, SWOFF, m*8*4096),
                "buffer_load_dwordx4 v2, s[%d:%d], s%d offen lds" % (RW2, RW2+3, ST1)]
    def u_piece(slot, kk, dt):
        b = UB + 24*slot + 12*kk + 4*dt
        return ["buffer_load_dwordx4 v[%d:%d], v%d, s[%d:%d], s%d offen offset:%d%s" % (b, b+3, 3+dt, RU, RU+3, SUOFF, kk*1024, ld)]
    def issue_w(slot):
        for m in range(4):
            for x in w_piece(slot, m): a(x)
        a("s_add_u32 s%d, s%d, %d" % (SWOFF, SWOFF, 32*4096))
    def issue_u(slot):
        for kk in range(2):
            for dt in range(3):
                for x in u_piece(slot, kk, dt): a(x)
        a("s_add_u32 s%d, s%d, 2048" % (SUOFF, SUOFF))
    def compute(slot, refill, first=False):
        for kk in range(2):
            for st in range(2):
                b = FB + 8*kk + 4*st
                for rd in range(2):
                    a("ds_read_b64_tr_b16 v[%d:%d], v%d offset:%d" % (b+2*rd, b+2*rd+1, 6+st, slot*4096 + kk*2048 + rd*1024))
        def M(kk, dt, st): a(mfma(acc(dt, st), UB + 24*slot + 12*kk + 4*dt, FB + 8*kk + 4*st, None if (first and kk == 0) else acc(dt, st)))
        def E(lst):
            if refill:
                for x in lst: a(x)
        a("s_waitcnt lgkmcnt(4)")
        for dt in range(3):
            M(0, dt, 0); M(0, dt, 1); E(u_piece(slot, 0, dt))
        a("s_waitcnt lgkmcnt(0)")
        M(1,0,0); E(w_piece(slot,0)); M(1,0,1); E(u_piece(slot,1,0))
        M(1,1,0); E(w_piece(slot,1)); M(1,1,1); E(u_piece(slot,1,1))
        M(1,2,0); E(w_piece(slot,2)); M(1,2,1); E(w_piece(slot,3)); E(u_piece(slot,1,2))
        E(["s_add_u32 s%d, s%d, %d" % (SWOFF, SWOFF, 32*4096), "s_add_u32 s%d, s%d, 2048" % (SUOFF, SUOFF)])
    a("s_mov_b32 s%d, 0" % SWOFF)
    a("s_mov_b32 s%d, 0" % SUOFF)
    for sl in range(NS): issue_w(sl)
    if "before_u" in hooks: hooks["before_u"](a)
    stamp(a, 7)
    for sl in range(NS): issue_u(sl)
    a("s_setprio %d" % int(os.environ.get("G2PRIO", "0")))
    a("s_mov_b32 s%d, 0" % SCH)
    for sl in range(NS):
        a("s_waitcnt vmcnt(%d)" % (6*(NS-1-sl) + 10*sl))
        compute(sl, True, sl == 0)
    LL = a.uid("M2_loop")
    a.label(LL)
    for sl in range(NS):
        a("s_waitcnt vmcnt(%d)" % (10*(NS-1)))
        compute(sl, True)
    a("s_add_u32 s%d, s%d, 1" % (SCH, SCH))
    a("s_cmp_lt_u32 s%d, %d" % (SCH, 12//NS - 2))
    a("s_cbranch_scc1 %s" % LL)
    for sl in range(NS):
        a("s_waitcnt vmcnt(%d)" % (10*(NS-1-sl)))
        compute(sl, False)
    stamp(a, 8)
    a("s_setprio 2")
    def wo_issue(ks):
        slot = ks % 6
        a("s_mov_b32 s%d, %d" % (ST1, ks*16*1280))
        for m in range(3):
            a("s_add_u32 m0, s%d, %d" % (SRING, slot*3072 + m*1024))
            a("s_nop 0")
            a("buffer_load_dwordx4 v%d, s[%d:%d], s%d offen lds" % (10+m, RWO, RWO+3, ST1))
    for ks in range(6): wo_issue(ks)
    if "before_o" in hooks: hooks["before_o"](a)
    srd(a, RO, P_WS, OQ_SIZE, OQ_OFF)
    for ks in range(10):
        a("s_mov_b32 s%d, %d" % (ST1, ks*1024))
        for st in range(2):
            b = OBF + 8*ks + 4*st
            a("buffer_load_dwordx4 v[%d:%d], v%d, s[%d:%d], s%d offen%s" % (b, b+3, 14+st, RO, RO+3, ST1, ld))
    for ks in range(10):
        slot = ks % 6
        if ks <= 5: a("s_waitcnt vmcnt(%d)" % (2*(9-ks) + 3*min(ks, 4)))
        else:       a("s_waitcnt vmcnt(%d)" % (3*(9-ks)))
        for dt in range(3):
            for rd in range(2):
                b = FB + 4*dt + 2*rd
                a("ds_read_b64_tr_b16 v[%d:%d], v13 offset:%d" % (b, b+1, slot*3072 + rd*768 + dt*64))
        for dt in range(3):
            a("s_waitcnt lgkmcnt(%d)" % (2*(2-dt)))
            for st in range(2):
                a(mfma(acc(dt, st), FB + 4*dt, OBF + 8*ks + 4*st, acc(dt, st)))
        if ks < 4: wo_issue(ks+6)
    stamp(a, 9)
    a.nop(12)
    a("s_barrier")
    a("v_lshlrev_b32 v2, 4, v1")
    for ip in range(1, 4):
        a("s_add_u32 s%d, s%d, %d" % (ST1, S_WAVE, ip))
        a("s_and_b32 s%d, s%d, 3" % (ST1, ST1))
        a("s_mul_i32 s%d, s%d, 18432" % (ST1, ST1))
        a("v_add_u32 v3, s%d, v2" % ST1)
        for t in range(6):
            b = ACC + 16*t + 4*ip
            a("ds_write_b128 v3, v[%d:%d] offset:%d" % (b, b+3, (ip-1)*6144 + t*1024))
    a("s_waitcnt lgkmcnt(0)")
    a("s_barrier")
    a("s_mul_i32 s%d, s%d, 18432" % (ST1, S_WAVE))
    a("v_add_u32 v3, s%d, v2" % ST1)
    for sl in range(3):
        for t in range(6):
            b = 32 + 24*sl + 4*t
            a("ds_read_b128 v[%d:%d], v3 offset:%d" % (b, b+3, sl*6144 + t*1024))
    a("v_lshlrev_b32 v30, 16, v30")
    a("v_lshlrev_b32 v31, 16, v31")
    srd(a, RXO, P_OUT, S*D*2)
    a("s_waitcnt lgkmcnt(0)")
    LSK = a.uid("M2_skip")
    for dt in range(3):
        if dt == 2:
            a("s_cmp_eq_u32 s%d, 6" % SDG)
            a("s_cbranch_scc1 %s" % LSK)
        for st in range(2):
            t = 2*dt + st
            c = ACC + 16*t
            xb = 18 + 4*dt + 2*st
            for j in range(4):
                a("v_add_f32 v%d, v%d, v%d" % (32+4*t+j, 32+4*t+j, 56+4*t+j))
                a("v_add_f32 v%d, v%d, v%d" % (c+j, c+j, 80+4*t+j))
            for j in range(4):
                a("v_add_f32 v%d, v%d, v%d" % (c+j, c+j, 32+4*t+j))
            a("v_lshlrev_b32 v112, 16, v%d" % xb)
            a("v_and_b32 v113, 0xffff0000, v%d" % xb)
            a("v_lshlrev_b32 v114, 16, v%d" % (xb+1))
            a("v_and_b32 v115, 0xffff0000, v%d" % (xb+1))
            for j in range(4):
                a("v_add_f32 v%d, v%d, v%d" % (112+j, 112+j, 30+st))
            for j in range(4):
                a("v_add_f32 v%d, v%d, v%d" % (c+j, c+j, 112+j))
            a("v_cvt_pk_bf16_f32 v%d, v%d, v%d" % (c+4, c, c+1))
            a("v_cvt_pk_bf16_f32 v%d, v%d, v%d" % (c+5, c+2, c+3))
            a("buffer_store_dwordx2 v[%d:%d], v%d, s[%d:%d], 0 offen offset:%d" % (c+4, c+5, 16+st, RXO, RXO+3, 64*dt))
    a.label(LSK)
    a.label(LEND)
    stamp(a, 10)
```

```python
from common import *
import common
PROFILE = common.PROFILE
EXP = common.EXP
import math, struct
import os as _os
def f2u(x): return struct.unpack("<I", struct.pack("<f", x))[0]
KVS0, KVS1 = 0, 32768
ST0, ST_STR = 0, 18432
EXS = 79872; EXC = EXS + 512; EXF = EXC + 512
STG, SHG, SHEAD, STTA, STTB, STL = 35, 36, 37, 38, 39, 5
SONES = 6
SKC, SDST, SDEL, SSTG, ST1, ST2, ST3 = 60, 61, 62, 63, 64, 65, 66
SC, SKVD, SKVO, SPASS = 67, 68, 69, 70
SWN0, SWN1, SWN2 = 71, 72, 73
SXO, SWO, SXD, SXW = 74, 75, 76, 77
SD2, SWO2 = 98, 99
QDUMMY = 77824
RX, RW, RKV, RO = R0, R1, R2, R3
VL, VH, VT = 1, 2, 3
Q1 = (80, 88); Q2 = (84, 86)
SB = (96, 112); OB = (128, 144); CB = (160, 176)
TB = 192; PB = 200
K1 = (208, 212); K2 = (216, 220); V1 = (224, 228); V2 = (232, 236)
KAC, KAN, K2C, K2N, VAC, VAN = 240, 241, 242, 243, 244, 245
VKVD, VOST = 246, 247

def kv_dma(a, sdst, soff, ld=''):
    g = []
    g.append(["s_mul_i32 s%d, s%d, 6144" % (ST1, S_WAVE), "s_add_u32 m0, s%d, s%d" % (sdst, ST1), "s_add_u32 s%d, s%d, 4096" % (ST2, soff),
              "buffer_load_dwordx4 v%d, s[%d:%d], s%d offen%s lds" % (VKVD, RKV, RKV+3, soff, ld)])
    for k in (1, 2, 3):
        g.append(["buffer_load_dwordx4 v%d, s[%d:%d], s%d offen offset:%d%s lds" % (VKVD, RKV, RKV+3, soff, 1024*k, ld)])
    g.append(["s_add_u32 m0, m0, 4096", "s_nop 0", "buffer_load_dwordx4 v%d, s[%d:%d], s%d offen%s lds" % (VKVD, RKV, RKV+3, ST2, ld)])
    g.append(["buffer_load_dwordx4 v%d, s[%d:%d], s%d offen offset:1024%s lds" % (VKVD, RKV, RKV+3, ST2, ld)])
    return g

def qproj_dma_prep(a):
    a("s_lshl_b32 s%d, s%d, 7" % (SXO, ST3))
    a("s_cmp_lt_u32 s%d, 10" % ST3)
    a("s_cselect_b32 s%d, s%d, 0x40000000" % (SXO, SXO))
    a("s_mul_i32 s%d, s%d, 81920" % (SWO, ST3))
    a("s_add_u32 s%d, s%d, s%d" % (SXD, SDST, SXW))
    a("s_cmp_lt_u32 s%d, 2" % S_WAVE)
    a("s_cselect_b32 s%d, s%d, 0" % (SD2, SDST))
    a("s_cselect_b32 s%d, s%d, 0x40000000" % (SWO2, SWO))
def qproj_dma_pieces():
    g = []
    g.append(["s_mov_b32 m0, s%d" % SXD, "s_add_u32 s%d, s%d, 64" % (ST1, SXO),
              "buffer_load_dwordx4 v4, s[%d:%d], s%d offen lds" % (RX, RX+3, SXO)])
    g.append(["s_add_u32 m0, s%d, 4096" % SXD, "s_nop 0",
              "buffer_load_dwordx4 v4, s[%d:%d], s%d offen lds" % (RX, RX+3, ST1)])
    for m, sn in enumerate((SWN0, SWN1, SWN2)):
        g.append(["s_add_u32 m0, s%d, s%d" % (SDST if m < 2 else SD2, sn), "s_nop 0",
                  "buffer_load_dwordx4 v%d, s[%d:%d], s%d offen lds" % (5+m, RW, RW+3, SWO if m < 2 else SWO2)])
    return g

def dq_of_mq(a, vl, dst, t1, t2):
    a("v_and_b32 v%d, 3, v%d" % (t1, vl))
    a("v_bfe_u32 v%d, v%d, 4, 1" % (t2, vl))
    a("v_lshl_add_u32 v%d, v%d, 2, v%d" % (t1, t2, t1))
    a("v_lshrrev_b32 v%d, 1, v%d" % (t2, t1))
    a("v_xor_b32 v%d, v%d, v%d" % (t2, t2, t1))
    a("v_and_b32 v%d, 1, v%d" % (t2, t2))
    a("v_mul_u32_u24 v%d, 3, v%d" % (t2, t2))
    a("v_xor_b32 v%d, v%d, v%d" % (t2, t2, t1))
    a("v_cmp_gt_u32 vcc, 4, v%d" % t1)
    a("v_mov_b32 v%d, 4" % dst)
    a("s_nop 0")
    a("v_cndmask_b32 v%d, v%d, v%d, vcc" % (dst, dst, t2))

def gen_qproj(a, hooks):
    a("; ---------- q projection ----------")
    if EXP.get("early"): a("s_memtime s[50:51]")
    a("v_lshrrev_b32 v20, 2, v%d" % VL)
    a("s_lshl_b32 s%d, s%d, 6" % (ST1, STG))
    a("s_lshl_b32 s%d, s%d, 4" % (ST2, S_WAVE))
    a("s_add_u32 s%d, s%d, s%d" % (ST1, ST1, ST2))
    a("v_add_u32 v20, s%d, v20" % ST1)
    a("s_movk_i32 s%d, 1280" % ST3)
    a("v_mul_lo_u32 v20, v20, s%d" % ST3)
    a("v_and_b32 v21, 3, v%d" % VL)
    a("v_bfe_u32 v22, v%d, 4, 2" % VL)
    a("v_xor_b32 v21, v21, v22")
    a("v_lshl_add_u32 v4, v21, 4, v20")
    if EXP.get("early"): a("s_memtime s[52:53]")
    a("s_add_u32 s%d, s%d, 4" % (SWN1, S_WAVE))
    a("s_add_u32 s%d, s%d, 8" % (SWN2, S_WAVE))
    a("s_cmp_lt_u32 s%d, 2" % S_WAVE)
    a("s_cselect_b32 s%d, s%d, s%d" % (SWN2, SWN2, SWN1))
    a("s_mov_b32 s%d, s%d" % (SWN0, S_WAVE))
    a("s_mul_i32 s%d, s%d, 160" % (ST2, SHG))
    for m, sn in enumerate((SWN0, SWN1, SWN2)):
        a("s_lshl_b32 s%d, s%d, 6" % (ST1, sn))
        a("v_add_u32 v20, s%d, v%d" % (ST1, VL))
        a("v_mul_u32_u24 v21, 6554, v20")
        a("v_lshrrev_b32 v21, 16, v21")
        a("v_mul_u32_u24 v22, 10, v21")
        a("v_sub_u32 v22, v20, v22")
        a("v_mul_lo_u32 v21, v21, s%d" % ST3)
        a("v_lshl_add_u32 v21, v22, 4, v21")
        a("v_add_u32 v%d, s%d, v21" % (5+m, ST2))
        a("s_lshl_b32 s%d, s%d, 10" % (sn, sn))
        a("s_add_u32 s%d, s%d, 8192" % (sn, sn))
        if m == 2:
            a("s_cmp_lt_u32 s%d, 2" % S_WAVE)
            a("s_cselect_b32 s%d, s%d, %d" % (sn, sn, QDUMMY))
    if EXP.get("early"): a("s_memtime s[54:55]")
    a("s_waitcnt lgkmcnt(0)")
    stamp_init(a); stamp_rt(a, 0); stamp(a, 1)
    if EXP.get("early"):
        a("s_sub_u32 s91, s81, s48"); a("s_sub_u32 s92, s81, s50"); a("s_sub_u32 s93, s81, s52"); a("s_sub_u32 s94, s81, s54")
    srd(a, RKV, P_WS, KV_SIZE, KV_OFF)
    srd(a, RX, P_X, S*D*2)
    srd(a, RW, P_WQ, D*D*2)
    a("s_lshl_b32 s%d, s%d, 10" % (SXW, S_WAVE))
    for kc in range(2):
        a("s_mov_b32 s%d, %d" % (ST3, kc))
        a("s_mov_b32 s%d, %d" % (SDST, ST0 + kc*ST_STR))
        qproj_dma_prep(a)
        for g in qproj_dma_pieces():
            for x in g: a(x)
    if not EXP.get("notouch"):
        a("s_lshr_b32 s%d, s2, 3" % ST1)
        a("s_mul_i32 s%d, s%d, 20" % (ST1, ST1))
        a("s_mul_i32 s%d, s%d, 5" % (ST2, S_WAVE))
        a("s_add_u32 s%d, s%d, s%d" % (ST1, ST1, ST2))
        a("v_mul_u32_u24 v20, 6554, v%d" % VL)
        a("v_lshrrev_b32 v20, 16, v20")
        a("v_mul_u32_u24 v21, 10, v20")
        a("v_sub_u32 v21, v%d, v21" % VL)
        a("v_lshlrev_b32 v21, 7, v21")
        a("v_add_u32 v22, s%d, v20" % ST1)
        a("v_mul_u32_u24 v22, 1280, v22")
        a("v_add_u32 v22, v22, v21")
        a("s_mov_b32 exec_hi, 0x3ffff")
        a("buffer_load_dword v255, v22, s[%d:%d], 0 offen" % (RW, RW+3))
        a("s_lshl_b32 s%d, s%d, 6" % (ST1, STG))
        a("s_lshl_b32 s%d, s%d, 3" % (ST2, SHG))
        a("s_add_u32 s%d, s%d, s%d" % (ST1, ST1, ST2))
        a("s_lshl_b32 s%d, s%d, 1" % (ST2, S_WAVE))
        a("s_add_u32 s%d, s%d, s%d" % (ST1, ST1, ST2))
        a("s_mov_b32 exec_hi, 0")
        a("s_mov_b32 exec_lo, 0xfffff")
        a("v_add_u32 v22, s%d, v20" % ST1)
        a("v_mul_u32_u24 v22, 1280, v22")
        a("v_add_u32 v22, v22, v21")
        a("buffer_load_dword v255, v22, s[%d:%d], 0 offen" % (RX, RX+3))
        a("s_mov_b64 exec, -1")
    a("s_setprio %d" % int(_os.environ.get("APRIO0B", "0")))
    a("v_lshrrev_b32 v20, 4, v%d" % VT)
    a("s_lshl_b32 s%d, s%d, 1" % (ST1, STL))
    a("v_add_u32 v20, s%d, v20" % ST1)
    a("v_lshlrev_b32 v20, 10, v20")
    a("v_and_b32 v21, 15, v%d" % VT)
    a("v_lshl_add_u32 v20, v21, 6, v20")
    a("v_bfe_u32 v21, v%d, 2, 2" % VT)
    a("v_xor_b32 v21, v21, v%d" % VH)
    a("v_lshl_add_u32 v20, v21, 4, v20")
    a("v_add_u32 v8, %d, v20" % ST0)
    a("v_xor_b32 v9, 32, v8")
    a("s_cmp_eq_u32 s%d, 0" % STL)
    a("s_movk_i32 s%d, -2048" % ST2)
    a("s_cselect_b32 s%d, 2048, s%d" % (ST1, ST2))
    a("v_add_u32 v10, s%d, v8" % ST1)
    a("v_add_u32 v11, s%d, v9" % ST1)
    dq_of_mq(a, VL, 23, 21, 22)
    a("v_bfe_u32 v20, v%d, 2, 2" % VL)
    a("v_lshl_add_u32 v20, v%d, 3, v20" % VH)
    a("v_mul_u32_u24 v20, 160, v20")
    a("v_lshl_add_u32 v20, v23, 3, v20")
    a("s_mul_i32 s%d, s%d, 40" % (ST1, S_WAVE))
    a("s_add_u32 s%d, s%d, %d" % (ST1, ST1, ST0 + 8192))
    a("v_add_u32 v12, s%d, v20" % ST1)
    for r in range(16, 20): a("v_mov_b32 v%d, 0x3f803f80" % r)
    for r in list(range(48, 80)) + list(range(96, 112)): a("v_mov_b32 v%d, 0" % r)
    a("s_mov_b32 s%d, 0x3f803f80" % SONES)
    a("s_mov_b32 s%d, 0" % SKC)
    a("s_mov_b32 s%d, 0" % SSTG)
    kv_addr_init(a)
    for r in range(CB[0], CB[0]+32): a("v_mov_b32 v%d, 0" % r)
    FS = (20, 32, 208, 220)
    LT = a.uid("QP_top")
    stamp(a, 2)
    stamp(a, 3)
    ntouch = 0 if EXP.get("notouch") else 2
    def reads(ks, b):
        if EXP.get("qnoread"): return
        seg, k1 = ks >> 1, ks & 1
        a("ds_read_b64_tr_b16 v[%d:%d], v12 offset:%d" % (b, b+1, ks*2560))
        a("ds_read_b64_tr_b16 v[%d:%d], v12 offset:%d" % (b+2, b+3, ks*2560+640))
        a("ds_read_b128 v[%d:%d], v%d offset:%d" % (b+4, b+7, 8+k1, seg*4096))
        a("ds_read_b128 v[%d:%d], v%d offset:%d" % (b+8, b+11, 10+k1, seg*4096))
    def q_iter():
        a("s_add_u32 s%d, s%d, 2" % (ST3, SKC))
        a("s_add_u32 s%d, s%d, 2" % (SDST, SSTG))
        a("s_and_b32 s%d, s%d, 3" % (SDST, SDST))
        a("s_mul_i32 s%d, s%d, %d" % (SDST, SDST, ST_STR))
        qproj_dma_prep(a)
        pieces = qproj_dma_pieces()
        if EXP.get("qnodma"): pieces = [[] for _ in pieces]
        for ks in range(4):
            b = FS[ks]
            if ks == 2:
                a("s_waitcnt vmcnt(5)")
                a("s_barrier")
                a("s_cmp_eq_u32 s%d, 3" % SSTG)
                a("s_mov_b32 s%d, %d" % (SDEL, ST_STR))
                a("s_cselect_b32 s%d, %d, s%d" % (SDEL, -3*ST_STR, SDEL))
                for r in range(8, 13): a("v_add_u32 v%d, s%d, v%d" % (r, SDEL, r))
                a("s_add_u32 s%d, s%d, 1" % (SSTG, SSTG))
                a("s_and_b32 s%d, s%d, 3" % (SSTG, SSTG))
                a("s_add_u32 s%d, s%d, 1" % (SKC, SKC))
            reads((ks+2) & 3, FS[(ks+2) & 3])
            a("s_waitcnt lgkmcnt(8)")
            pat = {0: [0, 1, None], 1: [2, 3, 4], 2: [None]*3, 3: [None]*3}[ks]
            ms = [mfma(48, b, b+4, 48), mfma(64, b, b+8, 64), mfma(96, b, 16, 96)]
            for i in range(3):
                if not EXP.get("qnomfma") and not (i == 2 and EXP.get("qnocs")): a(ms[i])
                if pat[i] is not None:
                    for x in pieces[pat[i]]: a(x)
    a("s_waitcnt vmcnt(%d)" % (5 + ntouch))
    a("s_barrier")
    reads(0, FS[0]); reads(1, FS[1])
    a.label(LT)
    q_iter(); q_iter()
    a("s_cmp_lt_u32 s%d, 10" % SKC)
    a("s_cbranch_scc1 %s" % LT)
    if "q_tail" in hooks: hooks["q_tail"](a)
    a("s_waitcnt vmcnt(0) lgkmcnt(0)")
    stamp(a, 4)
    a("s_barrier")
    if "after_qproj_barrier" in hooks: hooks["after_qproj_barrier"](a)
    a("s_waitcnt vmcnt(12)")
    c = f2u(math.log2(math.e) / math.sqrt(20.0))
    a("v_mul_f32 v15, 0x%x, v15" % c)
    a("v_mul_f32 v19, 0x%x, v19" % c)
    for t, (dacc, mean, rc) in enumerate(((48, 14, 15), (64, 18, 19))):
        for r in range(12):
            a("v_fma_f32 v%d, -v%d, v%d, v%d" % (dacc+r, mean, 96+r, dacc+r))
        for r in range(12):
            a("v_mul_f32 v%d, v%d, v%d" % (dacc+r, rc, dacc+r))
        for i in range(4):
            a("v_cvt_pk_bf16_f32 v%d, v%d, v%d" % (Q1[t]+i, dacc+2*i, dacc+2*i+1))
        for i in range(2):
            a("v_cvt_pk_bf16_f32 v%d, v%d, v%d" % (Q2[t]+i, dacc+8+2*i, dacc+9+2*i))
    a("v_cmp_gt_u32 vcc, 32, v%d" % VL)
    a("s_nop 1")
    for t in range(2):
        for i in range(2):
            a("v_cndmask_b32 v%d, 0, v%d, vcc" % (Q2[t]+i, Q2[t]+i))

def kv_addr_init(a):
    a("v_lshlrev_b32 v%d, 4, v%d" % (KAC, VL))
    a("v_lshlrev_b32 v%d, 3, v%d" % (K2C, VT))
    a("v_add_u32 v%d, 8192, v%d" % (K2C, K2C))
    a("v_min_u32 v20, 21, v%d" % VT)
    a("v_lshlrev_b32 v20, 4, v20")
    a("v_mul_u32_u24 v21, 384, v%d" % VH)
    a("v_add_u32 v20, v20, v21")
    a("v_add_u32 v%d, 10240, v20" % VAC)
    for c, n in ((KAC, KAN), (K2C, K2N), (VAC, VAN)):
        a("v_add_u32 v%d, %d, v%d" % (n, KVS1, c))
    a("s_mul_i32 s%d, s%d, 6144" % (ST1, S_WAVE))
    a("v_lshlrev_b32 v%d, 4, v%d" % (VKVD, VL))
    a("v_add_u32 v%d, s%d, v%d" % (VKVD, ST1, VKVD))

def k2reg(kt): return K2[(kt >> 1) & 1] + 2*(kt & 1)

def gen_main(a, hooks):
    a("; ---------- attention main ----------")
    LPASS = a.uid("AT_pass"); LLOOP = a.uid("AT_loop")
    a.label(LPASS)
    for r in list(range(OB[0], OB[0]+32)) + list(range(TB, TB+8)) + list(range(PB, PB+8)) + list(range(V2[1], V2[1]+4)):
        a("v_mov_b32 v%d, 0" % r)
    a("s_waitcnt vmcnt(6)")
    a("s_barrier")
    a("ds_read_b128 v[%d:%d], v%d" % (K1[0], K1[0]+3, KAC))
    a("ds_read2_b64 v[%d:%d], v%d offset0:0 offset1:32" % (K2[0], K2[0]+3, K2C))
    a("ds_read_b128 v[%d:%d], v%d" % (V1[0], V1[0]+3, VAC))
    a("ds_read_b128 v[%d:%d], v%d offset:768" % (V2[0], V2[0]+3, VAC))
    a("s_waitcnt lgkmcnt(2)")
    a(mfma(SB[0], K1[0], Q1[0], CB[0]))
    a(mfma8(SB[0], k2reg(0), Q2[0], SB[0]))
    a("s_mov_b32 s%d, 0" % SC)
    a("s_waitcnt lgkmcnt(0)")
    stamp(a, 5)
    mark(a, 4)
    a.nop(16)
    dmag = kv_dma(a, SKVD, SKVO, hooks.get('ld', ''))
    a.label(LLOOP)
    for n in range(16):
        kt, t = n >> 1, n & 1
        n1 = n + 1; kt1, t1 = n1 >> 1, n1 & 1
        tp = (n - 1) & 1; ktp = (n - 1) >> 1
        ms = [mfma(SB[t1], K1[kt1 & 1], Q1[t1], CB[t1]),
              mfma(OB[tp], V2[ktp & 1], PB+4, OB[tp]),
              mfma8(SB[t1], k2reg(kt1 & 7), Q2[t1], SB[t1]),
              mfma(OB[t], V1[kt & 1], PB, OB[t])]
        for q in range(4):
            a(ms[q])
            extra = []
            nk = kt + 1
            if t == 0 and q == 0:
                extra.append("ds_read_b128 v[%d:%d], v%d offset:%d" % (K1[nk&1], K1[nk&1]+3, KAC if nk < 8 else KAN, (nk & 7)*1024))
            if t == 0 and q == 2:
                extra.append("ds_read_b128 v[%d:%d], v%d offset:%d" % (V1[nk&1], V1[nk&1]+3, VAC if nk < 8 else VAN, (nk & 7)*1536))
            if t == 1 and q == 0:
                extra.append("ds_read_b128 v[%d:%d], v%d offset:%d" % (V2[nk&1], V2[nk&1]+3, VAC if nk < 8 else VAN, (nk & 7)*1536 + 768))
            k2pos = (t == 1 and q == 2 and kt % 2 == 0 and kt != 6) or (n == 14 and q == 1)
            if k2pos:
                pk = (kt + 2) if n != 14 else 8
                b = K2[(pk >> 1) & 1]
                p = (pk & 7) >> 1
                extra.append("ds_read2_b64 v[%d:%d], v%d offset0:%d offset1:%d" % (b, b+3, K2C if pk < 8 else K2N, p*64, p*64+32))
            if q == 3:
                if n == 13:
                    if PROFILE:
                        extra += ["s_memtime s[78:79]", "s_waitcnt lgkmcnt(0)", "s_mov_b32 s97, s78",
                                  "s_waitcnt vmcnt(0)", "s_memtime s[78:79]", "s_waitcnt lgkmcnt(0)", "s_sub_u32 s97, s78, s97", "s_add_u32 s91, s91, s97", "s_mov_b32 s97, s78",
                                  "s_barrier", "s_memtime s[78:79]", "s_waitcnt lgkmcnt(0)", "s_sub_u32 s97, s78, s97", "s_add_u32 s92, s92, s97"]
                    else:
                        extra += ["s_waitcnt vmcnt(0) lgkmcnt(0)", "s_barrier"]
                else: extra.append("s_waitcnt lgkmcnt(1)")
            di = (n - 14)*4 + q if n >= 14 else -1
            if 1 <= di <= 6 and di != 1 or (n == 14 and q == 0) or False:
                pass
            dma_at = {(14,0): 0, (14,2): 1, (14,3): 2, (15,1): 3, (15,2): 4, (15,3): 5}
            if (n, q) in dma_at:
                extra += dmag[dma_at[(n, q)]]
            if n == 15 and q == 3:
                extra += ["s_xor_b32 s%d, s%d, %d" % (SKVD, SKVD, KVS1), "s_add_u32 s%d, s%d, %d" % (SKVO, SKVO, KV_CHUNK)]
            for x in extra: a(x)
            Tc = TB + 4*(q & 1); Tp = TB + 4*((q+1) & 1)
            pd = PB + (2*q + 6) % 8
            es = ["v_exp_f32 v%d, v%d" % (Tc+e, SB[t]+4*q+e) for e in range(4)]
            cs = ["v_cvt_pk_bf16_f32 v%d, v%d, v%d" % (pd, Tp, Tp+1), "v_cvt_pk_bf16_f32 v%d, v%d, v%d" % (pd+1, Tp+2, Tp+3)]
            for x in (es[0], es[1], cs[0], cs[1], es[2], es[3]): a(x)
    for c, nn in ((KAC, KAN), (K2C, K2N), (VAC, VAN)):
        a("v_xor_b32 v%d, %d, v%d" % (c, KVS1, c))
        a("v_xor_b32 v%d, %d, v%d" % (nn, KVS1, nn))
    a("s_add_u32 s%d, s%d, 1" % (SC, SC))
    a("s_cmp_lt_u32 s%d, 8" % SC)
    a("s_cbranch_scc1 %s" % LLOOP)
    stamp(a, 6)
    a("v_cvt_pk_bf16_f32 v%d, v%d, v%d" % (PB+6, TB+4, TB+5))
    a("v_cvt_pk_bf16_f32 v%d, v%d, v%d" % (PB+7, TB+6, TB+7))
    a("s_nop 1")
    a(mfma(OB[1], V2[1], PB+4, OB[1]))
    a.nop(18)
    return LPASS

def gen_att(a, hooks=None):
    hooks = hooks or {}
    a("; ================= A-WG =================")
    a("s_setprio %d" % int(_os.environ.get("APRIO0", "3")))
    if EXP.get("early"): a("s_memtime s[48:49]")
    a("s_and_b32 s%d, s2, 7" % STG)
    a("s_lshr_b32 s%d, s2, 3" % ST1)
    a("s_and_b32 s%d, s%d, 7" % (SHG, ST1))
    a("s_lshr_b32 s%d, s%d, 3" % (ST1, ST1))
    a("s_lshl_b32 s%d, s%d, 3" % (ST1, ST1))
    a("s_add_u32 s%d, s%d, s%d" % (STG, STG, ST1))
    wave_lane(a, VL)
    a("v_lshrrev_b32 v%d, 5, v%d" % (VH, VL))
    a("v_and_b32 v%d, 31, v%d" % (VT, VL))
    a("s_nop 2")
    a("s_lshl_b32 s%d, s%d, 2" % (SHEAD, SHG))
    a("s_add_u32 s%d, s%d, s%d" % (SHEAD, SHEAD, S_WAVE))
    a("s_and_b32 s%d, s%d, 1" % (STL, S_WAVE))
    a("s_lshl_b32 s%d, s%d, 1" % (STTA, STG))
    a("s_add_u32 s%d, s%d, 1" % (STTB, STTA))
    a("s_sub_u32 s%d, s%d, s%d" % (STTB, STTB, STL))
    a("s_add_u32 s%d, s%d, s%d" % (STTA, STTA, STL))
    def after_q(a):
        if "wait_kv" in hooks: hooks["wait_kv"](a)
        ld = hooks.get("ld", "")
        srd(a, RO, P_WS, STAT_SIZE, STAT_OFF)
        a("v_lshlrev_b32 v20, 3, v%d" % VT)
        a("s_lshl_b32 s%d, s%d, 8" % (ST1, STTA))
        a("s_lshl_b32 s%d, s%d, 8" % (ST2, STTB))
        a("buffer_load_dwordx2 v[14:15], v20, s[%d:%d], s%d offen%s" % (RO, RO+3, ST1, ld))
        a("buffer_load_dwordx2 v[18:19], v20, s[%d:%d], s%d offen%s" % (RO, RO+3, ST2, ld))
        for (dst, off) in ((KVS0, 0), (KVS1, KV_CHUNK)):
            a("s_mov_b32 s%d, %d" % (SKVD, dst))
            a("s_mov_b32 s%d, %d" % (SKVO, off))
            for g in kv_dma(a, SKVD, SKVO, ld):
                for x in g: a(x)
        a("s_mov_b32 s%d, %d" % (SKVD, KVS0))
        a("s_mov_b32 s%d, %d" % (SKVO, 2*KV_CHUNK))
    h2 = dict(hooks); h2["after_qproj_barrier"] = after_q
    gen_qproj(a, h2)
    a("s_mov_b32 s%d, 0" % SPASS)
    a("s_setprio %d" % int(_os.environ.get("APRIO1", "0")))
    LPASS = gen_main(a, hooks)
    LOK = a.uid("AT_ok"); LMAXC = a.uid("AT_mc"); LMAXT = a.uid("AT_mt"); LNC = a.uid("AT_nochk")
    OL = 57344
    for t in range(2):
        l = 20 + t
        a("v_mov_b32 v22, v%d" % (OB[t]+8))
        a("v_mov_b32 v%d, v%d" % (l, OB[t]+8))
        a("s_nop 1")
        a("v_permlane32_swap_b32 v22, v%d" % l)
    a("s_mov_b32 s%d, 0" % ST1)
    a("s_cmp_lg_u32 s%d, 0" % SPASS)
    a("s_cbranch_scc1 %s" % LNC)
    a("v_mov_b32 v24, 0")
    a("v_mov_b32 v25, 0")
    a("v_mov_b32 v26, 0")
    for t in range(2):
        if EXP.get("nopkfma"):
            for r in range(12): a("v_fma_f32 v24, v%d, 0, v24" % (OB[t]+r))
            continue
        for r in range(0, 12, 2):
            a("v_pk_fma_f32 v[24:25], v[%d:%d], v[26:27], v[24:25] op_sel_hi:[1,0,1]" % (OB[t]+r, OB[t]+r+1))
    a("v_min_f32 v23, v20, v21")
    a("v_max_f32 v22, v20, v21")
    a("v_add_f32 v24, v24, v25")
    a("v_add_f32 v24, v24, v22")
    a("v_cmp_nle_f32 vcc, 0x21800000, v23")
    a("s_mov_b32 s%d, 0x71800000" % ST2)
    a("v_cmp_nge_f32 s[74:75], s%d, v24" % ST2)
    a("s_nop 1")
    a("s_or_b64 vcc, vcc, s[74:75]")
    a("s_cmp_lg_u64 vcc, 0")
    a("s_cselect_b32 s%d, 1, 0" % ST1)
    a.label(LNC)
    a("v_rcp_f32 v22, v20")
    a("v_rcp_f32 v23, v21")
    a("v_mov_b32 v24, s%d" % ST1)
    a("s_lshl_b32 s%d, s%d, 2" % (ST2, S_WAVE))
    a("s_add_u32 s%d, s%d, %d" % (ST2, ST2, EXF))
    a("v_mov_b32 v25, s%d" % ST2)
    a("ds_write_b32 v25, v24")
    a("v_lshlrev_b32 v26, 3, v%d" % VT)
    a("v_lshl_add_u32 v26, v%d, 8, v26" % VH)
    a("s_mul_i32 s%d, s%d, 1280" % (ST2, S_WAVE))
    a("s_mul_i32 s%d, s%d, 5120" % (ST3, STL))
    a("s_add_u32 s%d, s%d, s%d" % (ST2, ST2, ST3))
    a("s_add_u32 s%d, s%d, %d" % (ST2, ST2, OL))
    a("v_add_u32 v27, s%d, v26" % ST2)
    a("s_mul_i32 s%d, s%d, -10240" % (ST3, STL))
    a("s_add_u32 s%d, s%d, 5120" % (ST3, ST3))
    a("v_add_u32 v28, s%d, v27" % ST3)
    for t in range(2):
        for r in range(12): a("v_mul_f32 v%d, v%d, v%d" % (OB[t]+r, 22+t, OB[t]+r))
        b = 32 + 8*t
        for i in range(6):
            a("v_cvt_pk_bf16_f32 v%d, v%d, v%d" % (b+i, OB[t]+2*i, OB[t]+2*i+1))
        a("ds_write_b64 v%d, v[%d:%d]" % (27+t, b, b+1))
        a("ds_write_b64 v%d, v[%d:%d] offset:512" % (27+t, b+2, b+3))
        a("s_mov_b32 exec_hi, 0")
        a("ds_write_b64 v%d, v[%d:%d] offset:1024" % (27+t, b+4, b+5))
        a("s_mov_b64 exec, -1")
    a("s_waitcnt lgkmcnt(0)")
    a("s_barrier")
    a("v_mov_b32 v23, %d" % EXF)
    a("ds_read_b128 v[48:51], v23")
    a("v_lshlrev_b32 v26, 3, v%d" % VT)
    a("v_lshl_add_u32 v26, v%d, 9, v26" % VH)
    a("v_add_u32 v26, %d, v26" % OL)
    for m in range(3):
        a("s_add_u32 s%d, s%d, %d" % (ST1, S_WAVE, 4*m))
        a("s_cmp_ge_u32 s%d, 5" % ST1)
        a("s_cselect_b32 s%d, 1, 0" % ST2)
        a("s_mul_i32 s%d, s%d, 5" % (ST3, ST2))
        a("s_sub_u32 s%d, s%d, s%d" % (ST3, ST1, ST3))
        a("s_mul_i32 s74, s%d, 5120" % ST2)
        a("s_lshl_b32 s75, s%d, 10" % ST3)
        a("s_add_u32 s74, s74, s75")
        a("v_add_u32 v27, s74, v26")
        a("ds_read2_b64 v[%d:%d], v27 offset0:0 offset1:32" % (32+4*m, 35+4*m))
        a("s_lshl_b32 s74, s%d, 1" % STG)
        a("s_add_u32 s74, s74, s%d" % ST2)
        a("s_mul_i32 s74, s74, 40")
        a("s_mul_i32 s75, s%d, 5" % SHG)
        a("s_add_u32 s74, s74, s75")
        a("s_add_u32 s74, s74, s%d" % ST3)
        a("s_lshl_b32 s%d, s74, 10" % (98+m))
        if m == 2:
            a("s_cmp_lt_u32 s%d, 10" % ST1)
            a("s_cselect_b32 s100, s100, 0x40000000")
    a("s_waitcnt lgkmcnt(0)")
    a("v_or_b32 v48, v48, v49")
    a("v_or3_b32 v48, v48, v50, v51")
    a("s_nop 0")
    a("v_readfirstlane_b32 s%d, v48" % ST1)
    a("s_nop 3")
    a("s_cmp_eq_u32 s%d, 0" % ST1)
    a("s_cbranch_scc1 %s" % LOK)
    a("v_mov_b32 v20, 0xff800000")
    a("v_mov_b32 v21, 0xff800000")
    a("s_mov_b32 s%d, 0" % SC)
    a.label(LMAXC)
    a("s_barrier")
    a("s_mov_b32 s%d, %d" % (SKVD, KVS0))
    a("s_mul_i32 s%d, s%d, %d" % (SKVO, SC, KV_CHUNK))
    for g in kv_dma(a, SKVD, SKVO, hooks.get('ld', '')):
        for x in g: a(x)
    a("s_waitcnt vmcnt(0)")
    a("s_barrier")
    a("v_mov_b32 v22, v%d" % KAC)
    a("v_mov_b32 v23, v%d" % K2C)
    a("s_mov_b32 s%d, 0" % SKC)
    a.label(LMAXT)
    a("ds_read_b128 v[%d:%d], v22" % (K1[0], K1[0]+3))
    a("ds_read_b64 v[%d:%d], v23" % (K2[0], K2[0]+1))
    a("s_waitcnt lgkmcnt(0)")
    for t in range(2):
        a(mfma(SB[t], K1[0], Q1[t], None))
        a(mfma8(SB[t], K2[0], Q2[t], SB[t]))
    a.nop(18)
    for t in range(2):
        for r in range(0, 16, 2):
            a("v_max3_f32 v%d, v%d, v%d, v%d" % (20+t, SB[t]+r, SB[t]+r+1, 20+t))
    a("v_add_u32 v22, 1024, v22")
    a("v_add_u32 v23, 256, v23")
    a("s_add_u32 s%d, s%d, 1" % (SKC, SKC))
    a("s_cmp_lt_u32 s%d, 8" % SKC)
    a("s_cbranch_scc1 %s" % LMAXT)
    a("s_add_u32 s%d, s%d, 1" % (SC, SC))
    a("s_cmp_lt_u32 s%d, 8" % SC)
    a("s_cbranch_scc1 %s" % LMAXC)
    for t in range(2):
        a("v_mov_b32 v22, v%d" % (20+t))
        a("v_mov_b32 v23, v%d" % (20+t))
        a("s_nop 1")
        a("v_permlane32_swap_b32 v22, v23")
        a("s_nop 1")
        a("v_max_f32 v22, v22, v23")
        a("v_sub_f32 v22, 0, v22")
        for r in range(16): a("v_mov_b32 v%d, v22" % (CB[t]+r))
    a("s_barrier")
    a("s_mov_b32 s%d, %d" % (SKVD, KVS0))
    a("s_mov_b32 s%d, 0" % SKVO)
    for g in kv_dma(a, SKVD, SKVO, hooks.get('ld', '')):
        for x in g: a(x)
    a("s_mov_b32 s%d, %d" % (SKVD, KVS1))
    a("s_mov_b32 s%d, %d" % (SKVO, KV_CHUNK))
    for g in kv_dma(a, SKVD, SKVO, hooks.get('ld', '')):
        for x in g: a(x)
    a("s_mov_b32 s%d, %d" % (SKVD, KVS0))
    a("s_mov_b32 s%d, %d" % (SKVO, 2*KV_CHUNK))
    a("s_mov_b32 s%d, 1" % SPASS)
    a("s_branch %s" % LPASS)
    a.label(LOK)
    srd(a, RO, P_WS, OQ_SIZE, OQ_OFF)
    a("v_lshlrev_b32 v%d, 4, v%d" % (VOST, VL))
    st = hooks.get("st", "")
    for m in range(3):
        a("buffer_store_dwordx4 v[%d:%d], v%d, s[%d:%d], s%d offen%s" % (32+4*m, 35+4*m, VOST, RO, RO+3, 98+m, st))
    if "o_done" in hooks: hooks["o_done"](a)
    stamp(a, 7)
    a("s_waitcnt vmcnt(0)") if PROFILE else None
    stamp(a, 8); stamp_rt(a, 9)
    stamp_flush(a)
```

```python
from common import *
import common, math, struct
def f2u(x): return struct.unpack("<I", struct.pack("<f", x))[0]
RW1, RH, RB1, RU = R0, R1, R2, R3
SFT, SDT, ST1, ST2, SCH, SWOFF, SHOFF, SRING = 35, 36, 60, 61, 62, 63, 64, 65
ACC = 128
HB = 64
import os
NS = int(os.environ.get('M1NS', '2'))
AF = 32
def acc(ft, dt): return ACC + 32*ft + 16*dt

def gen_m1(a, hooks=None):
    hooks = hooks or {}
    LEND = a.uid("M1_end")
    a("; ================= M1 =================")
    a("s_and_b32 s%d, s%d, 7" % (ST1, S_J))
    a("s_lshr_b32 s%d, s%d, 3" % (ST2, S_J))
    a("s_cmp_ge_u32 s%d, 30" % ST2)
    a("s_cbranch_scc1 %s" % LEND)
    a("s_mul_hi_u32 s%d, s%d, 0x55555556" % (SDT, ST2))
    a("s_mul_i32 s%d, s%d, 3" % (SFT, SDT))
    a("s_sub_u32 s%d, s%d, s%d" % (SFT, ST2, SFT))
    a("s_mul_i32 s%d, s%d, 3" % (ST1, ST1))
    a("s_add_u32 s%d, s%d, s%d" % (SFT, SFT, ST1))
    wave_lane(a, 1)
    srd(a, RW1, P_W1, S*F*2)
    srd(a, RH, P_WS, HF_SIZE, HF_OFF)
    a("v_lshrrev_b32 v2, 3, v1")
    a("s_lshl_b32 s%d, s%d, 9" % (ST1, S_WAVE))
    a("v_add_u32 v2, s%d, v2" % ST1)
    a("s_movk_i32 s%d, 3072" % ST1)
    a("v_mul_lo_u32 v2, v2, s%d" % ST1)
    a("v_bfe_u32 v3, v1, 4, 1")
    a("v_lshlrev_b32 v3, 2, v3")
    a("v_and_b32 v4, 7, v1")
    a("v_xor_b32 v3, v3, v4")
    a("v_lshl_add_u32 v2, v3, 4, v2")
    a("s_lshl_b32 s%d, s%d, 7" % (ST1, SFT))
    a("v_add_u32 v2, s%d, v2" % ST1)
    a("s_lshl_b32 s%d, s%d, 8" % (ST1, SDT))
    a("s_lshl_b32 s%d, s%d, 5" % (ST2, S_WAVE))
    a("s_add_u32 s%d, s%d, s%d" % (ST1, ST1, ST2))
    a("s_lshl_b32 s%d, s%d, 10" % (ST1, ST1))
    a("v_lshlrev_b32 v3, 4, v1")
    a("v_add_u32 v3, s%d, v3" % ST1)
    a("v_add_u32 v4, 0x20000, v3")
    a("s_lshl_b32 s%d, s%d, 14" % (SRING, S_WAVE))
    a("v_lshrrev_b32 v8, 5, v1")
    a("v_bfe_u32 v9, v1, 2, 2")
    a("v_lshl_add_u32 v10, v8, 3, v9")
    a("v_lshlrev_b32 v10, 7, v10")
    a("v_bfe_u32 v11, v1, 4, 1")
    a("v_bfe_u32 v12, v1, 1, 1")
    a("v_lshl_add_u32 v11, v11, 1, v12")
    a("v_lshrrev_b32 v12, 1, v9")
    a("v_lshlrev_b32 v12, 2, v12")
    a("v_xor_b32 v11, v11, v12")
    a("v_lshl_add_u32 v10, v11, 4, v10")
    a("v_and_b32 v11, 1, v1")
    a("v_lshl_add_u32 v10, v11, 3, v10")
    a("v_add_u32 v5, s%d, v10" % SRING)
    a("v_xor_b32 v6, 64, v5")
    ld = hooks.get("ld", "")
    def w_piece(slot, m):
        return ["s_add_u32 m0, s%d, %d" % (SRING, slot*4096 + m*1024),
                "s_add_u32 s%d, s%d, %d" % (ST1, SWOFF, m*8*3072),
                "buffer_load_dwordx4 v2, s[%d:%d], s%d offen lds" % (RW1, RW1+3, ST1)]
    def h_piece(slot, kk, dt):
        b = HB + 16*slot + 8*kk + 4*dt
        return ["buffer_load_dwordx4 v[%d:%d], v%d, s[%d:%d], s%d offen offset:%d%s" % (b, b+3, 3+dt, RH, RH+3, SHOFF, kk*1024, ld)]
    def issue_w(slot):
        for m in range(4):
            for x in w_piece(slot, m): a(x)
        a("s_add_u32 s%d, s%d, %d" % (SWOFF, SWOFF, 32*3072))
    def issue_h(slot):
        for kk in range(2):
            for dt in range(2):
                for x in h_piece(slot, kk, dt): a(x)
        a("s_add_u32 s%d, s%d, 2048" % (SHOFF, SHOFF))
    a("s_mov_b32 s%d, 0" % SWOFF)
    a("s_mov_b32 s%d, 0" % SHOFF)
    if "before_h" in hooks: hooks["before_h"](a)
    if common.EXP.get("tw1"):
        a("s_mul_i32 s%d, s%d, 208" % (ST1, SDT))
        a("s_mul_i32 s%d, s%d, 52" % (ST2, S_WAVE))
        a("s_add_u32 s%d, s%d, s%d" % (ST1, ST1, ST2))
        a("v_add_u32 v13, s%d, v1" % ST1)
        a("v_mul_u32_u24 v13, 3072, v13")
        a("s_lshl_b32 s%d, s%d, 7" % (ST1, SFT))
        a("s_mov_b32 exec_hi, 0xfffff")
        a("buffer_load_dword v255, v13, s[%d:%d], s%d offen" % (RW1, RW1+3, ST1))
        a("s_mov_b64 exec, -1")
    for sl in range(NS): issue_w(sl)
    for sl in range(NS): issue_h(sl)
    a("s_setprio %d" % int(os.environ.get("G1PRIO", "0")))
    a("s_mov_b32 s%d, 0" % SCH)
    LL = a.uid("M1_loop")
    def compute(slot, refill, first=False):
        for kk in range(2):
            for ft in range(2):
                b = AF + 8*kk + 4*ft
                for rd in range(2):
                    a("ds_read_b64_tr_b16 v[%d:%d], v%d offset:%d" % (b+2*rd, b+2*rd+1, 5+ft, slot*4096 + kk*2048 + rd*512))
        def M(kk, ft, dt): a(mfma(acc(ft, dt), AF + 8*kk + 4*ft, HB + 16*slot + 8*kk + 4*dt, None if (first and kk == 0) else acc(ft, dt)))
        def E(lst):
            if refill:
                for x in lst: a(x)
        a("s_waitcnt lgkmcnt(4)")
        M(0,0,0); M(0,0,1); M(0,1,0); E(h_piece(slot,0,0)); M(0,1,1); E(h_piece(slot,0,1))
        a("s_waitcnt lgkmcnt(0)")
        M(1,0,0); E(w_piece(slot,0)); M(1,0,1); E(w_piece(slot,1)); M(1,1,0); E(w_piece(slot,2)); E(h_piece(slot,1,0))
        M(1,1,1); E(w_piece(slot,3)); E(h_piece(slot,1,1))
        E(["s_add_u32 s%d, s%d, %d" % (SWOFF, SWOFF, 32*3072), "s_add_u32 s%d, s%d, 2048" % (SHOFF, SHOFF)])
    for sl in range(NS):
        a("s_waitcnt vmcnt(%d)" % (4*(NS-1-sl) + 8*sl))
        compute(sl, True, sl == 0)
    a.label(LL)
    for sl in range(NS):
        a("s_waitcnt vmcnt(%d)" % (8*(NS-1)))
        compute(sl, True)
    a("s_add_u32 s%d, s%d, 1" % (SCH, SCH))
    a("s_cmp_lt_u32 s%d, %d" % (SCH, 16//NS - 2))
    a("s_cbranch_scc1 %s" % LL)
    for sl in range(NS):
        a("s_waitcnt vmcnt(%d)" % (8*(NS-1-sl)))
        compute(sl, False)
    stamp(a, 5)
    a("s_setprio 2")
    srd(a, RB1, P_B1, F*2)
    a("s_lshr_b32 s%d, s%d, 1" % (ST1, S_WAVE))
    a("s_lshl_b32 s%d, s%d, 6" % (ST1, ST1))
    a("s_lshl_b32 s%d, s%d, 7" % (ST2, SFT))
    a("s_add_u32 s%d, s%d, s%d" % (ST1, ST1, ST2))
    a("v_lshlrev_b32 v9, 3, v8")
    for i in range(4):
        a("buffer_load_dwordx2 v[%d:%d], v9, s[%d:%d], s%d offen offset:%d" % (48+2*i, 49+2*i, RB1, RB1+3, ST1, 16*i))
    ntouch = 0
    if "after_loop" in hooks: ntouch = hooks["after_loop"](a) or 0
    a.nop(12)
    a("s_barrier")
    a("v_lshlrev_b32 v10, 4, v1")
    a("s_lshl_b32 s%d, s%d, 12" % (ST1, S_WAVE))
    a("v_add_u32 v11, s%d, v10" % ST1)
    for t in range(4):
        for qd in range(4):
            b = ACC + 16*t + 4*qd
            a("ds_write_b128 v11, v[%d:%d] offset:%d" % (b, b+3, t*16384 + qd*1024))
    a("s_waitcnt lgkmcnt(0)")
    a("s_barrier")
    a("s_lshl_b32 s%d, s%d, 14" % (ST1, S_WAVE))
    a("v_add_u32 v11, s%d, v10" % ST1)
    for sw in range(4):
        for qd in range(4):
            b = 64 + 16*sw + 4*qd
            a("ds_read_b128 v[%d:%d], v11 offset:%d" % (b, b+3, sw*4096 + qd*1024))
    a("s_waitcnt vmcnt(%d) lgkmcnt(0)" % ntouch)
    for r in range(16):
        a("v_add_f32 v%d, v%d, v%d" % (64+r, 64+r, 80+r))
        a("v_add_f32 v%d, v%d, v%d" % (96+r, 96+r, 112+r))
    for i in range(4):
        for p in range(2):
            a("v_lshlrev_b32 v%d, 16, v%d" % (80+4*i+2*p, 48+2*i+p))
            a("v_and_b32 v%d, 0xffff0000, v%d" % (80+4*i+2*p+1, 48+2*i+p))
    for r in range(16):
        a("v_add_f32 v%d, v%d, v%d" % (64+r, 64+r, 96+r))
    for r in range(16):
        a("v_add_f32 v%d, v%d, v%d" % (64+r, 64+r, 80+r))
    c0 = -2.0*math.sqrt(2.0/math.pi)*math.log2(math.e)
    c1 = c0*0.044715
    a("s_mov_b32 s%d, 0x%x" % (ST1, f2u(c0)))
    a("s_mov_b32 s%d, 0x%x" % (ST2, f2u(c1)))
    a("v_mov_b32 v12, s%d" % ST1)
    for r in range(16): a("v_mul_f32 v%d, v%d, v%d" % (80+r, 64+r, 64+r))
    for r in range(16): a("v_fma_f32 v%d, v%d, s%d, v12" % (80+r, 80+r, ST2))
    for r in range(16): a("v_mul_f32 v%d, v%d, v%d" % (80+r, 80+r, 64+r))
    for r in range(16): a("v_exp_f32 v%d, v%d" % (80+r, 80+r))
    for r in range(16): a("v_add_f32 v%d, 1.0, v%d" % (80+r, 80+r))
    for r in range(16): a("v_rcp_f32 v%d, v%d" % (80+r, 80+r))
    a("s_nop 0")
    for r in range(16): a("v_mul_f32 v%d, v%d, v%d" % (64+r, 64+r, 80+r))
    for i in range(8): a("v_cvt_pk_bf16_f32 v%d, v%d, v%d" % (96+i, 64+2*i, 65+2*i))
    srd(a, RU, P_WS, UF_SIZE, UF_OFF)
    a("s_and_b32 s%d, s%d, 1" % (ST1, S_WAVE))
    a("s_lshl_b32 s%d, s%d, 1" % (ST2, SDT))
    a("s_add_u32 s%d, s%d, s%d" % (ST1, ST1, ST2))
    a("s_mul_i32 s%d, s%d, 96" % (ST1, ST1))
    a("s_lshl_b32 s%d, s%d, 2" % (ST2, SFT))
    a("s_add_u32 s%d, s%d, s%d" % (ST1, ST1, ST2))
    a("s_and_b32 s%d, s%d, 2" % (ST2, S_WAVE))
    a("s_add_u32 s%d, s%d, s%d" % (ST1, ST1, ST2))
    a("s_lshl_b32 s%d, s%d, 10" % (ST1, ST1))
    st = hooks.get("st", "")
    a("buffer_store_dwordx4 v[96:99], v10, s[%d:%d], s%d offen%s" % (RU, RU+3, ST1, st))
    a("buffer_store_dwordx4 v[100:103], v10, s[%d:%d], s%d offen offset:1024%s" % (RU, RU+3, ST1, st))
    if "u_done" in hooks: hooks["u_done"](a)
    a.label(LEND)
    stamp(a, 6)
```

```python
import sys, os
import common
common.PROFILE = bool(os.environ.get("PROF"))
from common import *
EXP = common.EXP
import m0

KD = """.section .rodata,"a"
.p2align 6
.amdhsa_kernel {name}
  .amdhsa_next_free_vgpr {nv}
  .amdhsa_next_free_sgpr 102
  .amdhsa_accum_offset {nv}
  .amdhsa_group_segment_fixed_size 0
  .amdhsa_kernarg_size 104
  .amdhsa_user_sgpr_count 2
  .amdhsa_user_sgpr_kernarg_segment_ptr 1
  .amdhsa_system_sgpr_workgroup_id_x 1
.end_amdhsa_kernel
.text
"""
def PROFILE_ON(): return common.PROFILE
def kernel_head(a, name):
    a.raw(".globl %s" % name)
    a.raw(".p2align 8")
    a.raw(".type %s,@function" % name)
    a.label(name)

def build_split(parts):
    a = Asm()
    launches = []
    body = Asm()
    body._uid = 0
    if "k1" in parts:
        name = "mixa_k1_kernel"
        kernel_head(body, name)
        body("s_cmp_ge_u32 s2, 256")
        body("s_cbranch_scc1 %s_end" % name)
        load_kernargs(body)
        body("s_mov_b32 s%d, s2" % S_J)
        m0.gen_m0(body, name + "_end", dict(args=lambda a: a("s_waitcnt lgkmcnt(0)")))
        body.label(name + "_end")
        body("s_endpgm")
        body.raw(KD.format(name=name, nv=256))
        launches.append((name, 256, 256, 81920))
    if "k2" in parts:
        import att, m1
        name = "mixa_k2_kernel"
        kernel_head(body, name)
        body("s_cmp_ge_u32 s2, 512")
        body("s_cbranch_scc1 %s_end" % name)
        load_kernargs(body)
        body("s_cmp_ge_u32 s2, 256")
        body("s_cbranch_scc1 %s_m" % name)
        att.gen_att(body)
        body("s_branch %s_end" % name)
        body.label(name + "_m")
        body("s_sub_u32 s%d, s2, 256" % S_J)
        body("s_waitcnt lgkmcnt(0)")
        m1.gen_m1(body)
        body.label(name + "_end")
        body("s_endpgm")
        body.raw(KD.format(name=name, nv=256))
        launches.append((name, 512, 256, 81920))
    if "k3" in parts:
        import m2
        name = "mixa_k3_kernel"
        kernel_head(body, name)
        body("s_cmp_ge_u32 s2, 256")
        body("s_cbranch_scc1 %s_end" % name)
        load_kernargs(body)
        body("s_mov_b32 s%d, s2" % S_J)
        body("s_waitcnt lgkmcnt(0)")
        m2.gen_m2(body)
        body.label(name + "_end")
        body("s_endpgm")
        body.raw(KD.format(name=name, nv=256))
        launches.append((name, 256, 256, 81920))
    return launches, body.text()

def build_fused():
    import att, m1, m2
    name = "parallel_sum__grouped_kv_mqa__mixer_token_mlp__prompt_kernel"
    a = Asm()
    kernel_head(a, name)
    LM, LE = name + "_m", name + "_end"
    a("s_cmp_ge_u32 s2, 512")
    a("s_cbranch_scc1 %s" % LE)
    if common.PROFILE: a("s_memrealtime s[96:97]")
    load_kernargs(a)
    if not EXP.get("nocodepf"):
        LPC = a.uid("PC")
        a("s_getpc_b64 s[76:77]")
        a.label(LPC)
        a("s_lshr_b32 s78, s2, 3")
        a("s_lshl_b32 s78, s78, 2")
        a("v_lshrrev_b32 v252, 6, v0")
        a("v_add_u32 v252, s78, v252")
        a("v_lshlrev_b32 v252, 7, v252")
        a("v_min_u32 v252, %s_end-%s, v252" % (name, LPC))
        a("global_load_dword v253, v252, s[76:77]")
    a("s_cmp_ge_u32 s2, 256")
    a("s_cbranch_scc1 %s" % LM)
    def q_tail(a):
        init_load(a, 254)
    def wait_kv(a):
        if EXP.get("aonly"): return
        LS = a.uid("A_ic")
        a("s_cmp_lg_u32 s%d, 0" % S_WAVE)
        a("s_cbranch_scc1 %s" % LS)
        init_check(a, 254)
        a.label(LS)
        wait_phase0(a, 20)
        stamp(a, 10)
    def o_done(a):
        a("s_waitcnt vmcnt(0)")
        a("s_barrier")
        a("s_cmp_lg_u32 s%d, 0" % S_WAVE)
        LS = a.uid("A_noarr")
        a("s_cbranch_scc1 %s" % LS)
        a("s_add_u32 s76, s%d, %d" % (P_WS, FO_OFF))
        a("s_addc_u32 s77, s%d, 0" % (P_WS+1))
        a("s_lshl_b32 s64, s%d, 8" % att.STG)
        arrive(a, 76, 64, 20)
        a.label(LS)
    att.gen_att(a, dict(wait_kv=wait_kv, q_tail=q_tail, o_done=o_done, st=" sc1", ld=" sc1"))
    a("s_branch %s" % LE)
    a.label(LM)
    if EXP.get("aonly"): a("s_endpgm")
    a("s_sub_u32 s%d, s2, 256" % S_J)
    a("s_setprio %d" % int(os.environ.get("MPRIO", "2")))
    def m_args(a):
        a("s_waitcnt lgkmcnt(0)")
        stamp_init(a); stamp_rt(a, 0); stamp(a, 1)
        LZ = a.uid("M_nozero")
        a("s_cmp_lg_u32 s%d, 0" % S_J)
        a("s_cbranch_scc1 %s" % LZ)
        a("v_cmp_gt_u32 vcc, 64, v0")
        a("s_nop 1")
        a("s_cmp_eq_u64 vcc, 0")
        a("s_cbranch_scc1 %s" % LZ)
        a("v_lshlrev_b32 v250, 8, v0")
        a("v_mov_b32 v249, 0")
        srd(a, R4, P_WS, FLAG_BYTES)
        a("buffer_store_dword v249, v250, s[%d:%d], 0 offen sc1" % (R4, R4+3))
        for k in (1, 2):
            a("v_add_u32 v251, %d, v250" % (16384*k))
            a("buffer_store_dword v249, v251, s[%d:%d], 0 offen sc1" % (R4, R4+3))
        a.label(LZ)
    def after_x(a):
        L = a.uid("M_noinit")
        a("s_lshl_b32 s64, s%d, 2" % S_J)
        a("s_add_u32 s64, s64, s%d" % S_WAVE)
        a("s_cmp_lg_u32 s64, 0")
        a("s_cbranch_scc1 %s" % L)
        a("v_mov_b32 v252, 1")
        a("v_mov_b32 v253, 0")
        a("s_mov_b64 exec, 1")
        a("global_store_dword v253, v252, s[%d:%d] sc1" % (P_DBG, P_DBG+1))
        a("s_mov_b64 exec, -1")
        a.label(L)
    def counter_arrive(a, off):
        a("s_add_u32 s76, s%d, %d" % (P_WS, off))
        a("s_addc_u32 s77, s%d, 0" % (P_WS+1))
        a("s_and_b32 s64, s%d, 63" % S_J)
        a("s_lshl_b32 s64, s64, 8")
        arrive(a, 76, 64, 252)
    def kv_done(a):
        a("s_waitcnt vmcnt(0)")
        init_check(a, 254)
        counter_arrive(a, P0_OFF)
    m0.gen_m0(a, None, dict(st=" sc1", args=m_args, after_x=after_x, mid=lambda a: init_load(a, 254), kv_done=kv_done))
    stamp(a, 2)
    a("s_waitcnt vmcnt(0)")
    a("s_barrier")
    LS = a.uid("M_noarr")
    a("s_cmp_lg_u32 s%d, 0" % S_WAVE)
    a("s_cbranch_scc1 %s" % LS)
    counter_arrive(a, PH_OFF)
    a.label(LS)
    stamp(a, 3)
    if EXP.get("m0only"):
        if PROFILE_ON(): stamp_flush(a)
        a("s_endpgm")
    def before_h(a):
        wait_phase0(a, 20, PH_OFF, pre=int(os.environ.get('HPRE', '56')), slp=int(os.environ.get('HSLP', '16')))
        stamp(a, 12)
        if EXP.get("m0poll"):
            stamp_flush(a)
            a("s_endpgm")
    def u_done(a):
        a("s_waitcnt vmcnt(0)")
        a("s_barrier")
        L2 = a.uid("M_noarr")
        a("s_cmp_lg_u32 s%d, 0" % S_WAVE)
        a("s_cbranch_scc1 %s" % L2)
        a("s_add_u32 s76, s%d, %d" % (P_WS, FU_OFF))
        a("s_addc_u32 s77, s%d, 0" % (P_WS+1))
        a("s_lshl_b32 s64, s%d, 8" % m1.SDT)
        arrive(a, 76, 64, 20)
        a.label(L2)
    def loader(a):
        L = a.uid("M_noload")
        a("s_lshr_b32 s66, s%d, 3" % S_J)
        a("s_cmp_lt_u32 s66, 30")
        a("s_cbranch_scc1 %s" % L)
        a("s_sub_u32 s66, s66, 30")
        a("s_lshl_b32 s66, s66, 3")
        a("s_and_b32 s67, s%d, 7" % S_J)
        a("s_add_u32 s66, s66, s67")
        a("s_lshl_b32 s66, s66, 2")
        a("s_add_u32 s66, s66, s%d" % S_WAVE)
        a("v_and_b32 v13, 63, v0")
        a("v_lshlrev_b32 v13, 7, v13")
        a("s_mul_i32 s67, s66, %d" % (768*128))
        for (ptr, size) in ((P_W1, S*F*2), (P_W2, F*S*2)):
            srd(a, R4, ptr, size)
            for k in range(12):
                a("s_add_u32 s68, s67, %d" % (k*8192))
                a("buffer_load_dword v255, v13, s[%d:%d], s68 offen" % (R4, R4+3))
        srd(a, R4, P_WO, D*D*2)
        a("s_mul_i32 s67, s66, %d" % (128*128))
        for k in range(2):
            a("s_add_u32 s68, s67, %d" % (k*8192))
            a("buffer_load_dword v255, v13, s[%d:%d], s68 offen" % (R4, R4+3))
        a("s_waitcnt vmcnt(0)")
        a.label(L)
    def touch_w2(a):
        if not EXP.get("tw2"): return 0
        a("s_lshr_b32 s66, s%d, 3" % S_J)
        a("s_mul_hi_u32 s67, s66, 0x24924925")
        a("s_mul_i32 s68, s67, 7")
        a("s_sub_u32 s68, s66, s68")
        a("s_lshl_b32 s67, s67, 3")
        a("s_and_b32 s69, s%d, 7" % S_J)
        a("s_add_u32 s67, s67, s69")
        a("s_mul_i32 s68, s68, 220")
        a("s_mul_i32 s69, s%d, 55" % S_WAVE)
        a("s_add_u32 s68, s68, s69")
        a("v_add_u32 v13, s68, v1")
        a("v_lshlrev_b32 v13, 12, v13")
        a("s_lshl_b32 s67, s67, 7")
        srd(a, R4, P_W2, F*S*2)
        a("s_mov_b32 exec_hi, 0x7fffff")
        a("buffer_load_dword v255, v13, s[%d:%d], s67 offen" % (R4, R4+3))
        a("s_mov_b64 exec, -1")
        a("s_mul_i32 s66, s%d, 27" % S_J)
        a("v_add_u32 v13, s66, v1")
        a("v_lshlrev_b32 v13, 7, v13")
        srd(a, R4, P_WO, D*D*2)
        a("s_mov_b32 exec_hi, 0")
        a("s_mov_b32 exec_lo, 0x7ffffff")
        a("buffer_load_dword v255, v13, s[%d:%d], 0 offen" % (R4, R4+3))
        a("s_mov_b64 exec, -1")
        return 2
    if EXP.get("loader"): loader(a)
    m1.gen_m1(a, dict(before_h=before_h, u_done=u_done, after_loop=touch_w2, st=" sc1", ld=" sc1"))
    a("s_barrier")
    def before_u(a):
        a("s_mul_i32 s76, s%d, 96" % m2.SDG)
        a("s_lshr_b32 s77, s76, 6")
        a("s_add_u32 s76, s76, 95")
        a("s_lshr_b32 s76, s76, 6")
        a("s_min_u32 s76, s76, 9")
        a("v_and_b32 v112, 1, v0")
        a("v_mov_b32 v113, s77")
        a("v_mov_b32 v114, s76")
        a("v_cmp_eq_u32 vcc, 0, v112")
        a("s_nop 1")
        a("v_cndmask_b32 v112, v114, v113, vcc")
        a("v_lshlrev_b32 v112, 8, v112")
        a("s_add_u32 s76, s%d, %d" % (P_WS, FU_OFF))
        a("s_addc_u32 s77, s%d, 0" % (P_WS+1))
        poll_loop(a, lambda a: a("global_load_dword v113, v112, s[76:77] sc1"),
                  lambda a: a("v_cmp_ne_u32 vcc, 24, v113"), 112)
    def before_o(a):
        a("s_lshl_b32 s76, s%d, 8" % m2.SSG)
        a("v_mov_b32 v112, s76")
        a("s_add_u32 s76, s%d, %d" % (P_WS, FO_OFF))
        a("s_addc_u32 s77, s%d, 0" % (P_WS+1))
        poll_loop(a, lambda a: a("global_load_dword v113, v112, s[76:77] sc1"),
                  lambda a: a("v_cmp_ne_u32 vcc, 8, v113"), 112)
        stamp(a, 11)
    m2.gen_m2(a, dict(before_u=before_u, before_o=before_o, ld=" sc1"))
    if common.PROFILE:
        a("s_waitcnt vmcnt(0)")
        stamp(a, 14); stamp_rt(a, 13)
        stamp_flush(a)
    a.label(LE)
    a("s_endpgm")
    a.raw(KD.format(name=name, nv=256))
    return [(name, 512, 256, 81920)], a.text()

def header(launches):
    ref = open("parallel_sum__grouped_kv_mqa__mixer_token_mlp__prompt.s.ref").read().split("\n")
    out = []
    for l in ref:
        if l.startswith("; @launch"): break
        if l.startswith("; Override launch"): continue
        if l.startswith("; grid=ceil"): continue
        out.append(l)
    for (n, g, b, lds) in launches:
        if len(launches) == 1 and n.startswith("parallel"):
            out.append("; @launch grid=(%d,1,1) block=(%d,1,1) lds=%d" % (g, b, lds))
        else:
            out.append("; @launch kernel=%s grid=(%d,1,1) block=(%d,1,1) lds=%d" % (n, g, b, lds))
    out.append('.amdgcn_target "amdgcn-amd-amdhsa--gfx950"')
    out.append(".text")
    return "\n".join(out) + "\n"

if __name__ == "__main__":
    mode = sys.argv[1]
    outp = sys.argv[2]
    if mode.startswith("split"):
        parts = mode.split(":")[1].split(",") if ":" in mode else ["k1","k2","k3"]
        launches, text = build_split(parts)
    elif mode == "fused":
        launches, text = build_fused()
    open(outp, "w").write(header(launches) + text)
    print(launches, len(text))
```

```python
from dsl import *
import os as _os
S, D, H, DH, F = 2048, 640, 32, 20, 1536
P_X, P_WQ, P_WK, P_WV, P_WO, P_BX, P_W1, P_B1 = 8, 10, 12, 14, 16, 18, 20, 22
P_W2, P_B2, P_OUT, P_DBG, P_WS = 24, 26, 28, 30, 32
FLAGS_OFF = 0
KV_OFF = 0x10000; KV_CHUNK = 22528; KV_SIZE = 8*KV_CHUNK
HF_OFF = 0x40000; HF_SIZE = 20*128*1024
UF_OFF = 0x2C0000; UF_SIZE = 20*96*1024
OQ_OFF = 0x4A0000; OQ_SIZE = 64*160*256
STAT_OFF = 0xC000; STAT_SIZE = 2048*8
FU_OFF = 0; FO_OFF = 10*256; P0_OFF = 42*256; PH_OFF = 106*256; NFLAG = 170; FLAG_BYTES = NFLAG*256
S_WG = 2
S_WAVE = 4
S_J = 34
R0, R1, R2, R3, R4 = 40, 44, 48, 52, 56

def load_kernargs(a):
    a("s_load_dwordx16 s[8:23], s[0:1], 0")
    a("s_load_dwordx8 s[24:31], s[0:1], 64")
    a("s_load_dwordx2 s[32:33], s[0:1], 96")

def wave_lane(a, vlane=1):
    a("v_lshrrev_b32 v%d, 6, v0" % vlane)
    a("s_nop 0")
    a("v_readfirstlane_b32 s%d, v%d" % (S_WAVE, vlane))
    a("v_and_b32 v%d, 63, v0" % vlane)

def dot2_ones_const(a, sreg):
    a("s_mov_b32 s%d, 0x3f803f80" % sreg)

def half_sum(a, x, t, u):
    a("v_mov_b32 v%d, v%d" % (t, x))
    a("v_mov_b32 v%d, v%d" % (u, x))
    a("s_nop 1")
    a("v_permlane32_swap_b32 v%d, v%d" % (t, u))
    a("s_nop 1")
    a("v_add_f32 v%d, v%d, v%d" % (x, t, u))

PROFILE = False
PROF_OFF = 0x800000
def stamp(a, idx):
    if not PROFILE: return
    a("s_memtime s[78:79]")
    a("s_waitcnt lgkmcnt(0)")
    a("s_mov_b32 s%d, s78" % (80+idx))
def stamp_rt(a, idx):
    if not PROFILE: return
    a("s_memrealtime s[78:79]")
    a("s_waitcnt lgkmcnt(0)")
    a("s_mov_b32 s%d, s78" % (80+idx))
def stamp_init(a):
    if not PROFILE: return
    for i in range(15): a("s_mov_b32 s%d, 0" % (80+i))
    a("s_mov_b32 s95, s96")
def stamp_flush(a):
    if not PROFILE: return
    a("s_add_u32 s76, s%d, 0x%x" % (P_WS, PROF_OFF))
    a("s_addc_u32 s77, s%d, 0" % (P_WS+1))
    a("v_lshrrev_b32 v4, 6, v0")
    a("s_lshl_b32 s78, s2, 2")
    a("v_add_u32 v4, s78, v4")
    a("v_lshlrev_b32 v4, 6, v4")
    for g in range(4):
        for i in range(4): a("v_mov_b32 v%d, s%d" % (8+i, 80+4*g+i))
        a("global_store_dwordx4 v4, v[8:11], s[76:77] offset:%d" % (16*g))
        a("s_nop 1")
    a("s_waitcnt vmcnt(0)")

import os as _os
EXP = dict((k, True) for k in _os.environ.get("EXP", "").split(",") if k)

SPIN_MAX = 1 << 16
def poll_loop(a, load_fn, check_fn, vtmp, pre=0, slp=None):
    L = a.uid("POLL"); E = a.uid("POLLE")
    a("s_cmp_lg_u32 s%d, 0" % S_WAVE)
    a("s_cbranch_scc1 %s" % E)
    a("s_mov_b32 s100, 0")
    while pre > 0:
        a("s_sleep %d" % min(pre, 127)); pre -= min(pre, 127)
    a.label(L)
    load_fn(a)
    a("s_waitcnt vmcnt(0)")
    check_fn(a)
    a("s_nop 1")
    a("s_cmp_eq_u64 vcc, 0")
    a("s_cbranch_scc1 %s" % E)
    a("s_sleep %d" % (slp if slp is not None else 2))
    a("s_add_u32 s100, s100, 1")
    a("s_cmp_lt_u32 s100, %d" % SPIN_MAX)
    a("s_cbranch_scc1 %s" % L)
    a.label(E)
    a("s_barrier")

def init_load(a, vdst):
    a("v_mov_b32 v%d, 0" % vdst)
    a("global_load_dword v%d, v%d, s[%d:%d] sc1" % (vdst, vdst, P_DBG, P_DBG+1))
def init_check(a, vdst):
    L = a.uid("INIT"); E = a.uid("INITE")
    a("s_mov_b32 s100, 0")
    a.label(L)
    a("v_cmp_eq_u32 vcc, 0, v%d" % vdst)
    a("s_nop 1")
    a("s_cmp_eq_u64 vcc, 0")
    a("s_cbranch_scc1 %s" % E)
    a("s_sleep 2")
    init_load(a, vdst)
    a("s_waitcnt vmcnt(0)")
    a("s_add_u32 s100, s100, 1")
    a("s_cmp_lt_u32 s100, %d" % SPIN_MAX)
    a("s_cbranch_scc1 %s" % L)
    a.label(E)
def wait_phase0(a, vt, off=None, pre=0, slp=None):
    a("s_add_u32 s76, s%d, %d" % (P_WS, P0_OFF if off is None else off))
    a("s_addc_u32 s77, s%d, 0" % (P_WS+1))
    a("v_and_b32 v%d, 63, v0" % vt)
    a("v_lshlrev_b32 v%d, 8, v%d" % (vt, vt))
    poll_loop(a, lambda a: a("global_load_dword v%d, v%d, s[76:77] sc1" % (vt+1, vt)),
              lambda a: a("v_cmp_ne_u32 vcc, 4, v%d" % (vt+1)), vt, pre, slp)

def arrive(a, ptr_pair, soff_reg, vt):
    a("v_mov_b32 v%d, s%d" % (vt, soff_reg))
    a("v_mov_b32 v%d, 1" % (vt+1))
    a("s_mov_b64 exec, 1")
    a("global_atomic_add v%d, v%d, s[%d:%d] sc1" % (vt, vt+1, ptr_pair, ptr_pair+1))
    a("s_mov_b64 exec, -1")

DBGT = bool(_os.environ.get("DBGT"))
def mark(a, word, invert=False, src=None):
    if not DBGT: return
    L = a.uid("MK")
    a("s_cmp_lg_u32 s%d, 0" % S_WAVE)
    a("s_cbranch_scc1 %s" % L)
    if src is None:
        a("s_memrealtime s[78:79]")
        a("s_waitcnt lgkmcnt(0)")
        src = 78
    if invert: a("s_not_b32 s79, s%d" % src)
    else: a("s_mov_b32 s79, s%d" % src)
    a("v_mov_b32 v250, s79")
    a("v_mov_b32 v251, %d" % (4*word))
    a("s_mov_b64 exec, 1")
    a("global_atomic_umax v251, v250, s[%d:%d] sc1" % (P_DBG, P_DBG+1))
    a("s_mov_b64 exec, -1")
    a.label(L)
```

```python
import sys, os
import common
common.PROFILE = bool(os.environ.get("PROF"))
from common import *
EXP = common.EXP
import m0

KD = """.section .rodata,"a"
.p2align 6
.amdhsa_kernel {name}
  .amdhsa_next_free_vgpr {nv}
  .amdhsa_next_free_sgpr 102
  .amdhsa_accum_offset {nv}
  .amdhsa_group_segment_fixed_size 0
  .amdhsa_kernarg_size 104
  .amdhsa_user_sgpr_count 2
  .amdhsa_user_sgpr_kernarg_segment_ptr 1
  .amdhsa_system_sgpr_workgroup_id_x 1
.end_amdhsa_kernel
.text
"""
def PROFILE_ON(): return common.PROFILE
def kernel_head(a, name):
    a.raw(".globl %s" % name)
    a.raw(".p2align 8")
    a.raw(".type %s,@function" % name)
    a.label(name)

def build_split(parts):
    a = Asm()
    launches = []
    body = Asm()
    body._uid = 0
    if "k1" in parts:
        name = "mixa_k1_kernel"
        kernel_head(body, name)
        body("s_cmp_ge_u32 s2, 256")
        body("s_cbranch_scc1 %s_end" % name)
        load_kernargs(body)
        body("s_mov_b32 s%d, s2" % S_J)
        m0.gen_m0(body, name + "_end", dict(args=lambda a: a("s_waitcnt lgkmcnt(0)")))
        body.label(name + "_end")
        body("s_endpgm")
        body.raw(KD.format(name=name, nv=256))
        launches.append((name, 256, 256, 81920))
    if "k2" in parts:
        import att, m1
        name = "mixa_k2_kernel"
        kernel_head(body, name)
        body("s_cmp_ge_u32 s2, 512")
        body("s_cbranch_scc1 %s_end" % name)
        load_kernargs(body)
        body("s_cmp_ge_u32 s2, 256")
        body("s_cbranch_scc1 %s_m" % name)
        att.gen_att(body)
        body("s_branch %s_end" % name)
        body.label(name + "_m")
        body("s_sub_u32 s%d, s2, 256" % S_J)
        body("s_waitcnt lgkmcnt(0)")
        m1.gen_m1(body)
        body.label(name + "_end")
        body("s_endpgm")
        body.raw(KD.format(name=name, nv=256))
        launches.append((name, 512, 256, 81920))
    if "k3" in parts:
        import m2
        name = "mixa_k3_kernel"
        kernel_head(body, name)
        body("s_cmp_ge_u32 s2, 256")
        body("s_cbranch_scc1 %s_end" % name)
        load_kernargs(body)
        body("s_mov_b32 s%d, s2" % S_J)
        body("s_waitcnt lgkmcnt(0)")
        m2.gen_m2(body)
        body.label(name + "_end")
        body("s_endpgm")
        body.raw(KD.format(name=name, nv=256))
        launches.append((name, 256, 256, 81920))
    return launches, body.text()

def build_fused():
    import att, m1, m2
    name = "parallel_sum__grouped_kv_mqa__mixer_token_mlp__prompt_kernel"
    a = Asm()
    kernel_head(a, name)
    LM, LE = name + "_m", name + "_end"
    a("s_cmp_ge_u32 s2, 512")
    a("s_cbranch_scc1 %s" % LE)
    if common.PROFILE or common.DBGT: a("s_memrealtime s[96:97]")
    load_kernargs(a)
    if not EXP.get("nocodepf"):
        LPC = a.uid("PC")
        a("s_getpc_b64 s[76:77]")
        a.label(LPC)
        a("s_lshr_b32 s78, s2, 3")
        a("s_lshl_b32 s78, s78, 2")
        a("v_lshrrev_b32 v252, 6, v0")
        a("v_add_u32 v252, s78, v252")
        a("v_lshlrev_b32 v252, 7, v252")
        a("v_min_u32 v252, %s_end-%s, v252" % (name, LPC))
        a("global_load_dword v253, v252, s[76:77]")
    a("s_cmp_ge_u32 s2, 256")
    a("s_cbranch_scc1 %s" % LM)
    def q_tail(a):
        mark(a, 1, invert=True, src=96)
        mark(a, 12, src=96)
        mark(a, 2)
        init_load(a, 254)
    def wait_kv(a):
        if EXP.get("aonly"): return
        LS = a.uid("A_ic")
        a("s_cmp_lg_u32 s%d, 0" % S_WAVE)
        a("s_cbranch_scc1 %s" % LS)
        init_check(a, 254)
        a.label(LS)
        wait_phase0(a, 20)
        stamp(a, 10)
        mark(a, 3)
    def o_done(a):
        mark(a, 5)
        a("s_waitcnt vmcnt(0)")
        a("s_barrier")
        a("s_cmp_lg_u32 s%d, 0" % S_WAVE)
        LS = a.uid("A_noarr")
        a("s_cbranch_scc1 %s" % LS)
        a("s_add_u32 s76, s%d, %d" % (P_WS, FO_OFF))
        a("s_addc_u32 s77, s%d, 0" % (P_WS+1))
        a("s_lshl_b32 s64, s%d, 8" % att.STG)
        arrive(a, 76, 64, 20)
        a.label(LS)
    att.gen_att(a, dict(wait_kv=wait_kv, q_tail=q_tail, o_done=o_done, st=" sc1", ld=" sc1"))
    a("s_branch %s" % LE)
    a.label(LM)
    if EXP.get("aonly"): a("s_endpgm")
    a("s_sub_u32 s%d, s2, 256" % S_J)
    a("s_setprio %d" % int(os.environ.get("MPRIO", "2")))
    def m_args(a):
        a("s_waitcnt lgkmcnt(0)")
        stamp_init(a); stamp_rt(a, 0); stamp(a, 1)
        LZ = a.uid("M_nozero")
        a("s_cmp_lg_u32 s%d, 0" % S_J)
        a("s_cbranch_scc1 %s" % LZ)
        a("v_cmp_gt_u32 vcc, 64, v0")
        a("s_nop 1")
        a("s_cmp_eq_u64 vcc, 0")
        a("s_cbranch_scc1 %s" % LZ)
        a("v_lshlrev_b32 v250, 8, v0")
        a("v_mov_b32 v249, 0")
        srd(a, R4, P_WS, FLAG_BYTES)
        a("buffer_store_dword v249, v250, s[%d:%d], 0 offen sc1" % (R4, R4+3))
        for k in (1, 2):
            a("v_add_u32 v251, %d, v250" % (16384*k))
            a("buffer_store_dword v249, v251, s[%d:%d], 0 offen sc1" % (R4, R4+3))
        a.label(LZ)
    def after_x(a):
        L = a.uid("M_noinit")
        a("s_lshl_b32 s64, s%d, 2" % S_J)
        a("s_add_u32 s64, s64, s%d" % S_WAVE)
        a("s_cmp_lg_u32 s64, 0")
        a("s_cbranch_scc1 %s" % L)
        a("v_mov_b32 v252, 1")
        a("v_mov_b32 v253, 0")
        a("s_mov_b64 exec, 1")
        a("global_store_dword v253, v252, s[%d:%d] sc1" % (P_DBG, P_DBG+1))
        a("s_mov_b64 exec, -1")
        a.label(L)
    def counter_arrive(a, off):
        a("s_add_u32 s76, s%d, %d" % (P_WS, off))
        a("s_addc_u32 s77, s%d, 0" % (P_WS+1))
        a("s_and_b32 s64, s%d, 63" % S_J)
        a("s_lshl_b32 s64, s64, 8")
        arrive(a, 76, 64, 252)
    def kv_done(a):
        mark(a, 10)
        a("s_waitcnt vmcnt(0)")
        init_check(a, 254)
        counter_arrive(a, P0_OFF)
    m0.gen_m0(a, None, dict(st=" sc1", args=m_args, after_x=after_x, mid=lambda a: init_load(a, 254), kv_done=kv_done))
    stamp(a, 2)
    a("s_waitcnt vmcnt(0)")
    a("s_barrier")
    LS = a.uid("M_noarr")
    a("s_cmp_lg_u32 s%d, 0" % S_WAVE)
    a("s_cbranch_scc1 %s" % LS)
    counter_arrive(a, PH_OFF)
    a.label(LS)
    stamp(a, 3)
    if EXP.get("m0only"):
        if PROFILE_ON(): stamp_flush(a)
        a("s_endpgm")
    def before_h(a):
        wait_phase0(a, 20, PH_OFF, pre=int(os.environ.get('HPRE', '56')), slp=int(os.environ.get('HSLP', '16')))
        mark(a, 6)
        stamp(a, 12)
        if EXP.get("m0poll"):
            stamp_flush(a)
            a("s_endpgm")
    def u_done(a):
        mark(a, 7)
        a("s_waitcnt vmcnt(0)")
        a("s_barrier")
        L2 = a.uid("M_noarr")
        a("s_cmp_lg_u32 s%d, 0" % S_WAVE)
        a("s_cbranch_scc1 %s" % L2)
        a("s_add_u32 s76, s%d, %d" % (P_WS, FU_OFF))
        a("s_addc_u32 s77, s%d, 0" % (P_WS+1))
        a("s_lshl_b32 s64, s%d, 8" % m1.SDT)
        arrive(a, 76, 64, 20)
        a.label(L2)
    def loader(a):
        L = a.uid("M_noload")
        a("s_lshr_b32 s66, s%d, 3" % S_J)
        a("s_cmp_lt_u32 s66, 30")
        a("s_cbranch_scc1 %s" % L)
        a("s_sub_u32 s66, s66, 30")
        a("s_lshl_b32 s66, s66, 3")
        a("s_and_b32 s67, s%d, 7" % S_J)
        a("s_add_u32 s66, s66, s67")
        a("s_lshl_b32 s66, s66, 2")
        a("s_add_u32 s66, s66, s%d" % S_WAVE)
        a("v_and_b32 v13, 63, v0")
        a("v_lshlrev_b32 v13, 7, v13")
        a("s_mul_i32 s67, s66, %d" % (768*128))
        for (ptr, size) in ((P_W1, S*F*2), (P_W2, F*S*2)):
            srd(a, R4, ptr, size)
            for k in range(12):
                a("s_add_u32 s68, s67, %d" % (k*8192))
                a("buffer_load_dword v255, v13, s[%d:%d], s68 offen" % (R4, R4+3))
        srd(a, R4, P_WO, D*D*2)
        a("s_mul_i32 s67, s66, %d" % (128*128))
        for k in range(2):
            a("s_add_u32 s68, s67, %d" % (k*8192))
            a("buffer_load_dword v255, v13, s[%d:%d], s68 offen" % (R4, R4+3))
        a("s_waitcnt vmcnt(0)")
        a.label(L)
    def touch_w2(a):
        if not EXP.get("tw2"): return 0
        a("s_lshr_b32 s66, s%d, 3" % S_J)
        a("s_mul_hi_u32 s67, s66, 0x24924925")
        a("s_mul_i32 s68, s67, 7")
        a("s_sub_u32 s68, s66, s68")
        a("s_lshl_b32 s67, s67, 3")
        a("s_and_b32 s69, s%d, 7" % S_J)
        a("s_add_u32 s67, s67, s69")
        a("s_mul_i32 s68, s68, 220")
        a("s_mul_i32 s69, s%d, 55" % S_WAVE)
        a("s_add_u32 s68, s68, s69")
        a("v_add_u32 v13, s68, v1")
        a("v_lshlrev_b32 v13, 12, v13")
        a("s_lshl_b32 s67, s67, 7")
        srd(a, R4, P_W2, F*S*2)
        a("s_mov_b32 exec_hi, 0x7fffff")
        a("buffer_load_dword v255, v13, s[%d:%d], s67 offen" % (R4, R4+3))
        a("s_mov_b64 exec, -1")
        a("s_mul_i32 s66, s%d, 27" % S_J)
        a("v_add_u32 v13, s66, v1")
        a("v_lshlrev_b32 v13, 7, v13")
        srd(a, R4, P_WO, D*D*2)
        a("s_mov_b32 exec_hi, 0")
        a("s_mov_b32 exec_lo, 0x7ffffff")
        a("buffer_load_dword v255, v13, s[%d:%d], 0 offen" % (R4, R4+3))
        a("s_mov_b64 exec, -1")
        return 2
    if EXP.get("loader"): loader(a)
    m1.gen_m1(a, dict(before_h=before_h, u_done=u_done, after_loop=touch_w2, st=" sc1", ld=" sc1"))
    a("s_barrier")
    def before_u(a):
        a("s_mul_i32 s76, s%d, 96" % m2.SDG)
        a("s_lshr_b32 s77, s76, 6")
        a("s_add_u32 s76, s76, 95")
        a("s_lshr_b32 s76, s76, 6")
        a("s_min_u32 s76, s76, 9")
        a("v_and_b32 v112, 1, v0")
        a("v_mov_b32 v113, s77")
        a("v_mov_b32 v114, s76")
        a("v_cmp_eq_u32 vcc, 0, v112")
        a("s_nop 1")
        a("v_cndmask_b32 v112, v114, v113, vcc")
        a("v_lshlrev_b32 v112, 8, v112")
        a("s_add_u32 s76, s%d, %d" % (P_WS, FU_OFF))
        a("s_addc_u32 s77, s%d, 0" % (P_WS+1))
        poll_loop(a, lambda a: a("global_load_dword v113, v112, s[76:77] sc1"),
                  lambda a: a("v_cmp_ne_u32 vcc, 24, v113"), 112)
    def before_o(a):
        mark(a, 8)
        a("s_lshl_b32 s76, s%d, 8" % m2.SSG)
        a("v_mov_b32 v112, s76")
        a("s_add_u32 s76, s%d, %d" % (P_WS, FO_OFF))
        a("s_addc_u32 s77, s%d, 0" % (P_WS+1))
        poll_loop(a, lambda a: a("global_load_dword v113, v112, s[76:77] sc1"),
                  lambda a: a("v_cmp_ne_u32 vcc, 8, v113"), 112)
        stamp(a, 11)
    m2.gen_m2(a, dict(before_u=before_u, before_o=before_o, ld=" sc1"))
    if common.DBGT:
        a("s_waitcnt vmcnt(0)")
        mark(a, 9)
    if common.PROFILE:
        a("s_waitcnt vmcnt(0)")
        stamp(a, 14); stamp_rt(a, 13)
        stamp_flush(a)
    a.label(LE)
    a("s_endpgm")
    a.raw(KD.format(name=name, nv=256))
    return [(name, 512, 256, 81920)], a.text()

def header(launches):
    ref = open("parallel_sum__grouped_kv_mqa__mixer_token_mlp__prompt.s.ref").read().split("\n")
    out = []
    for l in ref:
        if l.startswith("; @launch"): break
        if l.startswith("; Override launch"): continue
        if l.startswith("; grid=ceil"): continue
        out.append(l)
    for (n, g, b, lds) in launches:
        if len(launches) == 1 and n.startswith("parallel"):
            out.append("; @launch grid=(%d,1,1) block=(%d,1,1) lds=%d" % (g, b, lds))
        else:
            out.append("; @launch kernel=%s grid=(%d,1,1) block=(%d,1,1) lds=%d" % (n, g, b, lds))
    out.append('.amdgcn_target "amdgcn-amd-amdhsa--gfx950"')
    out.append(".text")
    return "\n".join(out) + "\n"

if __name__ == "__main__":
    mode = sys.argv[1]
    outp = sys.argv[2]
    if mode.startswith("split"):
        parts = mode.split(":")[1].split(",") if ":" in mode else ["k1","k2","k3"]
        launches, text = build_split(parts)
    elif mode == "fused":
        launches, text = build_fused()
    open(outp, "w").write(header(launches) + text)
    print(launches, len(text))
```

```python
from dsl import *
import os as _os
S, D, H, DH, F = 2048, 640, 32, 20, 1536
P_X, P_WQ, P_WK, P_WV, P_WO, P_BX, P_W1, P_B1 = 8, 10, 12, 14, 16, 18, 20, 22
P_W2, P_B2, P_OUT, P_DBG, P_WS = 24, 26, 28, 30, 32
FLAGS_OFF = 0
KV_OFF = 0x10000; KV_CHUNK = 22528; KV_SIZE = 8*KV_CHUNK
HF_OFF = 0x40000; HF_SIZE = 20*128*1024
UF_OFF = 0x2C0000; UF_SIZE = 20*96*1024
OQ_OFF = 0x4A0000; OQ_SIZE = 64*160*256
STAT_OFF = 0xC000; STAT_SIZE = 2048*8
FU_OFF = 0; FO_OFF = 10*256; P0_OFF = 42*256; PH_OFF = 106*256; NFLAG = 170; FLAG_BYTES = NFLAG*256
S_WG = 2
S_WAVE = 4
S_J = 34
R0, R1, R2, R3, R4 = 40, 44, 48, 52, 56

def load_kernargs(a):
    a("s_load_dwordx16 s[8:23], s[0:1], 0")
    a("s_load_dwordx8 s[24:31], s[0:1], 64")
    a("s_load_dwordx2 s[32:33], s[0:1], 96")

def wave_lane(a, vlane=1):
    a("v_lshrrev_b32 v%d, 6, v0" % vlane)
    a("s_nop 0")
    a("v_readfirstlane_b32 s%d, v%d" % (S_WAVE, vlane))
    a("v_and_b32 v%d, 63, v0" % vlane)

def dot2_ones_const(a, sreg):
    a("s_mov_b32 s%d, 0x3f803f80" % sreg)

def half_sum(a, x, t, u):
    a("v_mov_b32 v%d, v%d" % (t, x))
    a("v_mov_b32 v%d, v%d" % (u, x))
    a("s_nop 1")
    a("v_permlane32_swap_b32 v%d, v%d" % (t, u))
    a("s_nop 1")
    a("v_add_f32 v%d, v%d, v%d" % (x, t, u))

PROFILE = False
PROF_OFF = 0x800000
def stamp(a, idx):
    if not PROFILE: return
    a("s_memtime s[78:79]")
    a("s_waitcnt lgkmcnt(0)")
    a("s_mov_b32 s%d, s78" % (80+idx))
def stamp_rt(a, idx):
    if not PROFILE: return
    a("s_memrealtime s[78:79]")
    a("s_waitcnt lgkmcnt(0)")
    a("s_mov_b32 s%d, s78" % (80+idx))
def stamp_init(a):
    if not PROFILE: return
    for i in range(15): a("s_mov_b32 s%d, 0" % (80+i))
    a("s_mov_b32 s95, s96")
def stamp_flush(a):
    if not PROFILE: return
    a("s_add_u32 s76, s%d, 0x%x" % (P_WS, PROF_OFF))
    a("s_addc_u32 s77, s%d, 0" % (P_WS+1))
    a("v_lshrrev_b32 v4, 6, v0")
    a("s_lshl_b32 s78, s2, 2")
    a("v_add_u32 v4, s78, v4")
    a("v_lshlrev_b32 v4, 6, v4")
    for g in range(4):
        for i in range(4): a("v_mov_b32 v%d, s%d" % (8+i, 80+4*g+i))
        a("global_store_dwordx4 v4, v[8:11], s[76:77] offset:%d" % (16*g))
        a("s_nop 1")
    a("s_waitcnt vmcnt(0)")

import os as _os
EXP = dict((k, True) for k in _os.environ.get("EXP", "").split(",") if k)

SPIN_MAX = 1 << 16
def poll_loop(a, load_fn, check_fn, vtmp, pre=0, slp=None):
    L = a.uid("POLL"); E = a.uid("POLLE")
    a("s_cmp_lg_u32 s%d, 0" % S_WAVE)
    a("s_cbranch_scc1 %s" % E)
    a("s_mov_b32 s100, 0")
    while pre > 0:
        a("s_sleep %d" % min(pre, 127)); pre -= min(pre, 127)
    a.label(L)
    load_fn(a)
    a("s_waitcnt vmcnt(0)")
    check_fn(a)
    a("s_nop 1")
    a("s_cmp_eq_u64 vcc, 0")
    a("s_cbranch_scc1 %s" % E)
    a("s_sleep %d" % (slp if slp is not None else 2))
    a("s_add_u32 s100, s100, 1")
    a("s_cmp_lt_u32 s100, %d" % SPIN_MAX)
    a("s_cbranch_scc1 %s" % L)
    a.label(E)
    a("s_barrier")

def init_load(a, vdst):
    a("v_mov_b32 v%d, 0" % vdst)
    a("global_load_dword v%d, v%d, s[%d:%d] sc1" % (vdst, vdst, P_DBG, P_DBG+1))
def init_check(a, vdst):
    L = a.uid("INIT"); E = a.uid("INITE")
    a("s_mov_b32 s100, 0")
    a.label(L)
    a("v_cmp_eq_u32 vcc, 0, v%d" % vdst)
    a("s_nop 1")
    a("s_cmp_eq_u64 vcc, 0")
    a("s_cbranch_scc1 %s" % E)
    a("s_sleep 2")
    init_load(a, vdst)
    a("s_waitcnt vmcnt(0)")
    a("s_add_u32 s100, s100, 1")
    a("s_cmp_lt_u32 s100, %d" % SPIN_MAX)
    a("s_cbranch_scc1 %s" % L)
    a.label(E)
def wait_phase0(a, vt, off=None, pre=0, slp=None):
    a("s_add_u32 s76, s%d, %d" % (P_WS, P0_OFF if off is None else off))
    a("s_addc_u32 s77, s%d, 0" % (P_WS+1))
    a("v_and_b32 v%d, 63, v0" % vt)
    a("v_lshlrev_b32 v%d, 8, v%d" % (vt, vt))
    poll_loop(a, lambda a: a("global_load_dword v%d, v%d, s[76:77] sc1" % (vt+1, vt)),
              lambda a: a("v_cmp_ne_u32 vcc, 4, v%d" % (vt+1)), vt, pre, slp)

def arrive(a, ptr_pair, soff_reg, vt):
    a("v_mov_b32 v%d, s%d" % (vt, soff_reg))
    a("v_mov_b32 v%d, 1" % (vt+1))
    a("s_mov_b64 exec, 1")
    a("global_atomic_add v%d, v%d, s[%d:%d] sc1" % (vt, vt+1, ptr_pair, ptr_pair+1))
    a("s_mov_b64 exec, -1")

DBGT = bool(_os.environ.get("DBGT"))
def mark(a, word, invert=False, src=None):
    if not DBGT: return
    if src is None:
        a("s_memrealtime s[78:79]")
        a("s_waitcnt lgkmcnt(0)")
        src = 78
    a("s_mov_b32 s%d, s%d" % (80+word, src))
def mark_cyc(a, word):
    if not DBGT: return
    a("s_memtime s[78:79]")
    a("s_waitcnt lgkmcnt(0)")
    a("s_mov_b32 s%d, s78" % (80+word))
def mark_flush(a, wg, words):
    if not DBGT: return
    L = a.uid("MKF")
    a("s_cmp_lg_u32 s2, %d" % wg)
    a("s_cbranch_scc1 %s" % L)
    a("s_cmp_lg_u32 s%d, 0" % S_WAVE)
    a("s_cbranch_scc1 %s" % L)
    for w in words:
        a("v_mov_b32 v250, s%d" % (80+w))
        a("v_mov_b32 v251, %d" % (4*w))
        a("global_store_dword v251, v250, s[%d:%d] sc1" % (P_DBG, P_DBG+1))
        a("s_nop 1")
    a("s_waitcnt vmcnt(0)")
    a.label(L)
```

```python
import sys, os
import common
common.PROFILE = bool(os.environ.get("PROF"))
from common import *
EXP = common.EXP
import m0

KD = """.section .rodata,"a"
.p2align 6
.amdhsa_kernel {name}
  .amdhsa_next_free_vgpr {nv}
  .amdhsa_next_free_sgpr 102
  .amdhsa_accum_offset {nv}
  .amdhsa_group_segment_fixed_size 0
  .amdhsa_kernarg_size 104
  .amdhsa_user_sgpr_count 2
  .amdhsa_user_sgpr_kernarg_segment_ptr 1
  .amdhsa_system_sgpr_workgroup_id_x 1
.end_amdhsa_kernel
.text
"""
def PROFILE_ON(): return common.PROFILE
def kernel_head(a, name):
    a.raw(".globl %s" % name)
    a.raw(".p2align 8")
    a.raw(".type %s,@function" % name)
    a.label(name)

def build_split(parts):
    a = Asm()
    launches = []
    body = Asm()
    body._uid = 0
    if "k1" in parts:
        name = "mixa_k1_kernel"
        kernel_head(body, name)
        body("s_cmp_ge_u32 s2, 256")
        body("s_cbranch_scc1 %s_end" % name)
        load_kernargs(body)
        body("s_mov_b32 s%d, s2" % S_J)
        m0.gen_m0(body, name + "_end", dict(args=lambda a: a("s_waitcnt lgkmcnt(0)")))
        body.label(name + "_end")
        body("s_endpgm")
        body.raw(KD.format(name=name, nv=256))
        launches.append((name, 256, 256, 81920))
    if "k2" in parts:
        import att, m1
        name = "mixa_k2_kernel"
        kernel_head(body, name)
        body("s_cmp_ge_u32 s2, 512")
        body("s_cbranch_scc1 %s_end" % name)
        load_kernargs(body)
        body("s_cmp_ge_u32 s2, 256")
        body("s_cbranch_scc1 %s_m" % name)
        att.gen_att(body)
        body("s_branch %s_end" % name)
        body.label(name + "_m")
        body("s_sub_u32 s%d, s2, 256" % S_J)
        body("s_waitcnt lgkmcnt(0)")
        m1.gen_m1(body)
        body.label(name + "_end")
        body("s_endpgm")
        body.raw(KD.format(name=name, nv=256))
        launches.append((name, 512, 256, 81920))
    if "k3" in parts:
        import m2
        name = "mixa_k3_kernel"
        kernel_head(body, name)
        body("s_cmp_ge_u32 s2, 256")
        body("s_cbranch_scc1 %s_end" % name)
        load_kernargs(body)
        body("s_mov_b32 s%d, s2" % S_J)
        body("s_waitcnt lgkmcnt(0)")
        m2.gen_m2(body)
        body.label(name + "_end")
        body("s_endpgm")
        body.raw(KD.format(name=name, nv=256))
        launches.append((name, 256, 256, 81920))
    return launches, body.text()

def build_fused():
    import att, m1, m2
    name = "parallel_sum__grouped_kv_mqa__mixer_token_mlp__prompt_kernel"
    a = Asm()
    kernel_head(a, name)
    LM, LE = name + "_m", name + "_end"
    a("s_cmp_ge_u32 s2, 512")
    a("s_cbranch_scc1 %s" % LE)
    if common.PROFILE or common.DBGT: a("s_memrealtime s[96:97]")
    load_kernargs(a)
    if not EXP.get("nocodepf"):
        LPC = a.uid("PC")
        a("s_getpc_b64 s[76:77]")
        a.label(LPC)
        a("s_lshr_b32 s78, s2, 3")
        a("s_lshl_b32 s78, s78, 2")
        a("v_lshrrev_b32 v252, 6, v0")
        a("v_add_u32 v252, s78, v252")
        a("v_lshlrev_b32 v252, 7, v252")
        a("v_min_u32 v252, %s_end-%s, v252" % (name, LPC))
        a("global_load_dword v253, v252, s[76:77]")
    a("s_cmp_ge_u32 s2, 256")
    a("s_cbranch_scc1 %s" % LM)
    def q_tail(a):
        mark(a, 1, src=96)
        mark(a, 2)
        init_load(a, 254)
    def wait_kv(a):
        if EXP.get("aonly"): return
        LS = a.uid("A_ic")
        a("s_cmp_lg_u32 s%d, 0" % S_WAVE)
        a("s_cbranch_scc1 %s" % LS)
        init_check(a, 254)
        a.label(LS)
        wait_phase0(a, 20)
        stamp(a, 10)
        mark(a, 3)
    def o_done(a):
        mark(a, 5)
        a("s_waitcnt vmcnt(0)")
        a("s_barrier")
        a("s_cmp_lg_u32 s%d, 0" % S_WAVE)
        LS = a.uid("A_noarr")
        a("s_cbranch_scc1 %s" % LS)
        a("s_add_u32 s76, s%d, %d" % (P_WS, FO_OFF))
        a("s_addc_u32 s77, s%d, 0" % (P_WS+1))
        a("s_lshl_b32 s64, s%d, 8" % att.STG)
        arrive(a, 76, 64, 20)
        a.label(LS)
    att.gen_att(a, dict(wait_kv=wait_kv, q_tail=q_tail, o_done=o_done, st=" sc1", ld=" sc1"))
    mark_flush(a, 37, [1, 2, 3, 4, 5])
    a("s_branch %s" % LE)
    a.label(LM)
    if EXP.get("aonly"): a("s_endpgm")
    a("s_sub_u32 s%d, s2, 256" % S_J)
    a("s_setprio %d" % int(os.environ.get("MPRIO", "2")))
    def m_args(a):
        a("s_waitcnt lgkmcnt(0)")
        stamp_init(a); stamp_rt(a, 0); stamp(a, 1)
        LZ = a.uid("M_nozero")
        a("s_cmp_lg_u32 s%d, 0" % S_J)
        a("s_cbranch_scc1 %s" % LZ)
        a("v_cmp_gt_u32 vcc, 64, v0")
        a("s_nop 1")
        a("s_cmp_eq_u64 vcc, 0")
        a("s_cbranch_scc1 %s" % LZ)
        a("v_lshlrev_b32 v250, 8, v0")
        a("v_mov_b32 v249, 0")
        srd(a, R4, P_WS, FLAG_BYTES)
        a("buffer_store_dword v249, v250, s[%d:%d], 0 offen sc1" % (R4, R4+3))
        for k in (1, 2):
            a("v_add_u32 v251, %d, v250" % (16384*k))
            a("buffer_store_dword v249, v251, s[%d:%d], 0 offen sc1" % (R4, R4+3))
        a.label(LZ)
    def after_x(a):
        L = a.uid("M_noinit")
        a("s_lshl_b32 s64, s%d, 2" % S_J)
        a("s_add_u32 s64, s64, s%d" % S_WAVE)
        a("s_cmp_lg_u32 s64, 0")
        a("s_cbranch_scc1 %s" % L)
        a("v_mov_b32 v252, 1")
        a("v_mov_b32 v253, 0")
        a("s_mov_b64 exec, 1")
        a("global_store_dword v253, v252, s[%d:%d] sc1" % (P_DBG, P_DBG+1))
        a("s_mov_b64 exec, -1")
        a.label(L)
    def counter_arrive(a, off):
        a("s_add_u32 s76, s%d, %d" % (P_WS, off))
        a("s_addc_u32 s77, s%d, 0" % (P_WS+1))
        a("s_and_b32 s64, s%d, 63" % S_J)
        a("s_lshl_b32 s64, s64, 8")
        arrive(a, 76, 64, 252)
    def kv_done(a):
        mark(a, 10)
        mark(a, 15, src=96)
        a("s_waitcnt vmcnt(0)")
        init_check(a, 254)
        counter_arrive(a, P0_OFF)
    m0.gen_m0(a, None, dict(st=" sc1", args=m_args, after_x=after_x, mid=lambda a: init_load(a, 254), kv_done=kv_done))
    stamp(a, 2)
    a("s_waitcnt vmcnt(0)")
    a("s_barrier")
    LS = a.uid("M_noarr")
    a("s_cmp_lg_u32 s%d, 0" % S_WAVE)
    a("s_cbranch_scc1 %s" % LS)
    counter_arrive(a, PH_OFF)
    a.label(LS)
    stamp(a, 3)
    if EXP.get("m0only"):
        if PROFILE_ON(): stamp_flush(a)
        a("s_endpgm")
    def before_h(a):
        wait_phase0(a, 20, PH_OFF, pre=int(os.environ.get('HPRE', '56')), slp=int(os.environ.get('HSLP', '16')))
        mark(a, 6)
        mark_cyc(a, 11)
        stamp(a, 12)
        if EXP.get("m0poll"):
            stamp_flush(a)
            a("s_endpgm")
    def u_done(a):
        mark(a, 7)
        a("s_waitcnt vmcnt(0)")
        a("s_barrier")
        L2 = a.uid("M_noarr")
        a("s_cmp_lg_u32 s%d, 0" % S_WAVE)
        a("s_cbranch_scc1 %s" % L2)
        a("s_add_u32 s76, s%d, %d" % (P_WS, FU_OFF))
        a("s_addc_u32 s77, s%d, 0" % (P_WS+1))
        a("s_lshl_b32 s64, s%d, 8" % m1.SDT)
        arrive(a, 76, 64, 20)
        a.label(L2)
    def loader(a):
        L = a.uid("M_noload")
        a("s_lshr_b32 s66, s%d, 3" % S_J)
        a("s_cmp_lt_u32 s66, 30")
        a("s_cbranch_scc1 %s" % L)
        a("s_sub_u32 s66, s66, 30")
        a("s_lshl_b32 s66, s66, 3")
        a("s_and_b32 s67, s%d, 7" % S_J)
        a("s_add_u32 s66, s66, s67")
        a("s_lshl_b32 s66, s66, 2")
        a("s_add_u32 s66, s66, s%d" % S_WAVE)
        a("v_and_b32 v13, 63, v0")
        a("v_lshlrev_b32 v13, 7, v13")
        a("s_mul_i32 s67, s66, %d" % (768*128))
        for (ptr, size) in ((P_W1, S*F*2), (P_W2, F*S*2)):
            srd(a, R4, ptr, size)
            for k in range(12):
                a("s_add_u32 s68, s67, %d" % (k*8192))
                a("buffer_load_dword v255, v13, s[%d:%d], s68 offen" % (R4, R4+3))
        srd(a, R4, P_WO, D*D*2)
        a("s_mul_i32 s67, s66, %d" % (128*128))
        for k in range(2):
            a("s_add_u32 s68, s67, %d" % (k*8192))
            a("buffer_load_dword v255, v13, s[%d:%d], s68 offen" % (R4, R4+3))
        a("s_waitcnt vmcnt(0)")
        a.label(L)
    def touch_w2(a):
        if not EXP.get("tw2"): return 0
        a("s_lshr_b32 s66, s%d, 3" % S_J)
        a("s_mul_hi_u32 s67, s66, 0x24924925")
        a("s_mul_i32 s68, s67, 7")
        a("s_sub_u32 s68, s66, s68")
        a("s_lshl_b32 s67, s67, 3")
        a("s_and_b32 s69, s%d, 7" % S_J)
        a("s_add_u32 s67, s67, s69")
        a("s_mul_i32 s68, s68, 220")
        a("s_mul_i32 s69, s%d, 55" % S_WAVE)
        a("s_add_u32 s68, s68, s69")
        a("v_add_u32 v13, s68, v1")
        a("v_lshlrev_b32 v13, 12, v13")
        a("s_lshl_b32 s67, s67, 7")
        srd(a, R4, P_W2, F*S*2)
        a("s_mov_b32 exec_hi, 0x7fffff")
        a("buffer_load_dword v255, v13, s[%d:%d], s67 offen" % (R4, R4+3))
        a("s_mov_b64 exec, -1")
        a("s_mul_i32 s66, s%d, 27" % S_J)
        a("v_add_u32 v13, s66, v1")
        a("v_lshlrev_b32 v13, 7, v13")
        srd(a, R4, P_WO, D*D*2)
        a("s_mov_b32 exec_hi, 0")
        a("s_mov_b32 exec_lo, 0x7ffffff")
        a("buffer_load_dword v255, v13, s[%d:%d], 0 offen" % (R4, R4+3))
        a("s_mov_b64 exec, -1")
        return 2
    if EXP.get("loader"): loader(a)
    m1.gen_m1(a, dict(before_h=before_h, u_done=u_done, after_loop=touch_w2, st=" sc1", ld=" sc1"))
    a("s_barrier")
    def before_u(a):
        a("s_mul_i32 s76, s%d, 96" % m2.SDG)
        a("s_lshr_b32 s77, s76, 6")
        a("s_add_u32 s76, s76, 95")
        a("s_lshr_b32 s76, s76, 6")
        a("s_min_u32 s76, s76, 9")
        a("v_and_b32 v112, 1, v0")
        a("v_mov_b32 v113, s77")
        a("v_mov_b32 v114, s76")
        a("v_cmp_eq_u32 vcc, 0, v112")
        a("s_nop 1")
        a("v_cndmask_b32 v112, v114, v113, vcc")
        a("v_lshlrev_b32 v112, 8, v112")
        a("s_add_u32 s76, s%d, %d" % (P_WS, FU_OFF))
        a("s_addc_u32 s77, s%d, 0" % (P_WS+1))
        poll_loop(a, lambda a: a("global_load_dword v113, v112, s[76:77] sc1"),
                  lambda a: a("v_cmp_ne_u32 vcc, 24, v113"), 112)
    def before_o(a):
        mark(a, 8)
        a("s_lshl_b32 s76, s%d, 8" % m2.SSG)
        a("v_mov_b32 v112, s76")
        a("s_add_u32 s76, s%d, %d" % (P_WS, FO_OFF))
        a("s_addc_u32 s77, s%d, 0" % (P_WS+1))
        poll_loop(a, lambda a: a("global_load_dword v113, v112, s[76:77] sc1"),
                  lambda a: a("v_cmp_ne_u32 vcc, 8, v113"), 112)
        stamp(a, 11)
    m2.gen_m2(a, dict(before_u=before_u, before_o=before_o, ld=" sc1"))
    if common.DBGT:
        a("s_waitcnt vmcnt(0)")
        mark(a, 9)
        mark_cyc(a, 12)
        mark_flush(a, 293, [6, 7, 8, 9, 10, 11, 12, 15])
    if common.PROFILE:
        a("s_waitcnt vmcnt(0)")
        stamp(a, 14); stamp_rt(a, 13)
        stamp_flush(a)
    a.label(LE)
    a("s_endpgm")
    a.raw(KD.format(name=name, nv=256))
    return [(name, 512, 256, 81920)], a.text()

def header(launches):
    ref = open("parallel_sum__grouped_kv_mqa__mixer_token_mlp__prompt.s.ref").read().split("\n")
    out = []
    for l in ref:
        if l.startswith("; @launch"): break
        if l.startswith("; Override launch"): continue
        if l.startswith("; grid=ceil"): continue
        out.append(l)
    for (n, g, b, lds) in launches:
        if len(launches) == 1 and n.startswith("parallel"):
            out.append("; @launch grid=(%d,1,1) block=(%d,1,1) lds=%d" % (g, b, lds))
        else:
            out.append("; @launch kernel=%s grid=(%d,1,1) block=(%d,1,1) lds=%d" % (n, g, b, lds))
    out.append('.amdgcn_target "amdgcn-amd-amdhsa--gfx950"')
    out.append(".text")
    return "\n".join(out) + "\n"

if __name__ == "__main__":
    mode = sys.argv[1]
    outp = sys.argv[2]
    if mode.startswith("split"):
        parts = mode.split(":")[1].split(",") if ":" in mode else ["k1","k2","k3"]
        launches, text = build_split(parts)
    elif mode == "fused":
        launches, text = build_fused()
    open(outp, "w").write(header(launches) + text)
    print(launches, len(text))
```

```python
from common import *
import common
PROFILE = common.PROFILE
EXP = common.EXP
import math, struct
import os as _os
def f2u(x): return struct.unpack("<I", struct.pack("<f", x))[0]
KVS0, KVS1 = 0, 32768
ST0, ST_STR = 0, 18432
EXS = 79872; EXC = EXS + 512; EXF = EXC + 512
STG, SHG, SHEAD, STTA, STTB, STL = 35, 36, 37, 38, 39, 5
SONES = 6
SKC, SDST, SDEL, SSTG, ST1, ST2, ST3 = 60, 61, 62, 63, 64, 65, 66
SC, SKVD, SKVO, SPASS = 67, 68, 69, 70
SWN0, SWN1, SWN2 = 71, 72, 73
SXO, SWO, SXD, SXW = 74, 75, 76, 77
SD2, SWO2 = 98, 99
QDUMMY = 77824
RX, RW, RKV, RO = R0, R1, R2, R3
VL, VH, VT = 1, 2, 3
Q1 = (80, 88); Q2 = (84, 86)
SB = (96, 112); OB = (128, 144); CB = (160, 176)
TB = 192; PB = 200
K1 = (208, 212); K2 = (216, 220); V1 = (224, 228); V2 = (232, 236)
KAC, KAN, K2C, K2N, VAC, VAN = 240, 241, 242, 243, 244, 245
VKVD, VOST = 246, 247

def kv_dma(a, sdst, soff, ld=''):
    g = []
    g.append(["s_mul_i32 s%d, s%d, 6144" % (ST1, S_WAVE), "s_add_u32 m0, s%d, s%d" % (sdst, ST1), "s_add_u32 s%d, s%d, 4096" % (ST2, soff),
              "buffer_load_dwordx4 v%d, s[%d:%d], s%d offen%s lds" % (VKVD, RKV, RKV+3, soff, ld)])
    for k in (1, 2, 3):
        g.append(["buffer_load_dwordx4 v%d, s[%d:%d], s%d offen offset:%d%s lds" % (VKVD, RKV, RKV+3, soff, 1024*k, ld)])
    g.append(["s_add_u32 m0, m0, 4096", "s_nop 0", "buffer_load_dwordx4 v%d, s[%d:%d], s%d offen%s lds" % (VKVD, RKV, RKV+3, ST2, ld)])
    g.append(["buffer_load_dwordx4 v%d, s[%d:%d], s%d offen offset:1024%s lds" % (VKVD, RKV, RKV+3, ST2, ld)])
    return g

def qproj_dma_prep(a):
    a("s_lshl_b32 s%d, s%d, 7" % (SXO, ST3))
    a("s_cmp_lt_u32 s%d, 10" % ST3)
    a("s_cselect_b32 s%d, s%d, 0x40000000" % (SXO, SXO))
    a("s_mul_i32 s%d, s%d, 81920" % (SWO, ST3))
    a("s_add_u32 s%d, s%d, s%d" % (SXD, SDST, SXW))
    a("s_cmp_lt_u32 s%d, 2" % S_WAVE)
    a("s_cselect_b32 s%d, s%d, 0" % (SD2, SDST))
    a("s_cselect_b32 s%d, s%d, 0x40000000" % (SWO2, SWO))
def qproj_dma_pieces():
    g = []
    g.append(["s_mov_b32 m0, s%d" % SXD, "s_add_u32 s%d, s%d, 64" % (ST1, SXO),
              "buffer_load_dwordx4 v4, s[%d:%d], s%d offen lds" % (RX, RX+3, SXO)])
    g.append(["s_add_u32 m0, s%d, 4096" % SXD, "s_nop 0",
              "buffer_load_dwordx4 v4, s[%d:%d], s%d offen lds" % (RX, RX+3, ST1)])
    for m, sn in enumerate((SWN0, SWN1, SWN2)):
        g.append(["s_add_u32 m0, s%d, s%d" % (SDST if m < 2 else SD2, sn), "s_nop 0",
                  "buffer_load_dwordx4 v%d, s[%d:%d], s%d offen lds" % (5+m, RW, RW+3, SWO if m < 2 else SWO2)])
    return g

def dq_of_mq(a, vl, dst, t1, t2):
    a("v_and_b32 v%d, 3, v%d" % (t1, vl))
    a("v_bfe_u32 v%d, v%d, 4, 1" % (t2, vl))
    a("v_lshl_add_u32 v%d, v%d, 2, v%d" % (t1, t2, t1))
    a("v_lshrrev_b32 v%d, 1, v%d" % (t2, t1))
    a("v_xor_b32 v%d, v%d, v%d" % (t2, t2, t1))
    a("v_and_b32 v%d, 1, v%d" % (t2, t2))
    a("v_mul_u32_u24 v%d, 3, v%d" % (t2, t2))
    a("v_xor_b32 v%d, v%d, v%d" % (t2, t2, t1))
    a("v_cmp_gt_u32 vcc, 4, v%d" % t1)
    a("v_mov_b32 v%d, 4" % dst)
    a("s_nop 0")
    a("v_cndmask_b32 v%d, v%d, v%d, vcc" % (dst, dst, t2))

def gen_qproj(a, hooks):
    a("; ---------- q projection ----------")
    if EXP.get("early"): a("s_memtime s[50:51]")
    a("v_lshrrev_b32 v20, 2, v%d" % VL)
    a("s_lshl_b32 s%d, s%d, 6" % (ST1, STG))
    a("s_lshl_b32 s%d, s%d, 4" % (ST2, S_WAVE))
    a("s_add_u32 s%d, s%d, s%d" % (ST1, ST1, ST2))
    a("v_add_u32 v20, s%d, v20" % ST1)
    a("s_movk_i32 s%d, 1280" % ST3)
    a("v_mul_lo_u32 v20, v20, s%d" % ST3)
    a("v_and_b32 v21, 3, v%d" % VL)
    a("v_bfe_u32 v22, v%d, 4, 2" % VL)
    a("v_xor_b32 v21, v21, v22")
    a("v_lshl_add_u32 v4, v21, 4, v20")
    if EXP.get("early"): a("s_memtime s[52:53]")
    a("s_add_u32 s%d, s%d, 4" % (SWN1, S_WAVE))
    a("s_add_u32 s%d, s%d, 8" % (SWN2, S_WAVE))
    a("s_cmp_lt_u32 s%d, 2" % S_WAVE)
    a("s_cselect_b32 s%d, s%d, s%d" % (SWN2, SWN2, SWN1))
    a("s_mov_b32 s%d, s%d" % (SWN0, S_WAVE))
    a("s_mul_i32 s%d, s%d, 160" % (ST2, SHG))
    for m, sn in enumerate((SWN0, SWN1, SWN2)):
        a("s_lshl_b32 s%d, s%d, 6" % (ST1, sn))
        a("v_add_u32 v20, s%d, v%d" % (ST1, VL))
        a("v_mul_u32_u24 v21, 6554, v20")
        a("v_lshrrev_b32 v21, 16, v21")
        a("v_mul_u32_u24 v22, 10, v21")
        a("v_sub_u32 v22, v20, v22")
        a("v_mul_lo_u32 v21, v21, s%d" % ST3)
        a("v_lshl_add_u32 v21, v22, 4, v21")
        a("v_add_u32 v%d, s%d, v21" % (5+m, ST2))
        a("s_lshl_b32 s%d, s%d, 10" % (sn, sn))
        a("s_add_u32 s%d, s%d, 8192" % (sn, sn))
        if m == 2:
            a("s_cmp_lt_u32 s%d, 2" % S_WAVE)
            a("s_cselect_b32 s%d, s%d, %d" % (sn, sn, QDUMMY))
    if EXP.get("early"): a("s_memtime s[54:55]")
    a("s_waitcnt lgkmcnt(0)")
    stamp_init(a); stamp_rt(a, 0); stamp(a, 1)
    if EXP.get("early"):
        a("s_sub_u32 s91, s81, s48"); a("s_sub_u32 s92, s81, s50"); a("s_sub_u32 s93, s81, s52"); a("s_sub_u32 s94, s81, s54")
    srd(a, RKV, P_WS, KV_SIZE, KV_OFF)
    srd(a, RX, P_X, S*D*2)
    srd(a, RW, P_WQ, D*D*2)
    a("s_lshl_b32 s%d, s%d, 10" % (SXW, S_WAVE))
    for kc in range(2):
        a("s_mov_b32 s%d, %d" % (ST3, kc))
        a("s_mov_b32 s%d, %d" % (SDST, ST0 + kc*ST_STR))
        qproj_dma_prep(a)
        for g in qproj_dma_pieces():
            for x in g: a(x)
    if not EXP.get("notouch"):
        a("s_lshr_b32 s%d, s2, 3" % ST1)
        a("s_mul_i32 s%d, s%d, 20" % (ST1, ST1))
        a("s_mul_i32 s%d, s%d, 5" % (ST2, S_WAVE))
        a("s_add_u32 s%d, s%d, s%d" % (ST1, ST1, ST2))
        a("v_mul_u32_u24 v20, 6554, v%d" % VL)
        a("v_lshrrev_b32 v20, 16, v20")
        a("v_mul_u32_u24 v21, 10, v20")
        a("v_sub_u32 v21, v%d, v21" % VL)
        a("v_lshlrev_b32 v21, 7, v21")
        a("v_add_u32 v22, s%d, v20" % ST1)
        a("v_mul_u32_u24 v22, 1280, v22")
        a("v_add_u32 v22, v22, v21")
        a("s_mov_b32 exec_hi, 0x3ffff")
        a("buffer_load_dword v255, v22, s[%d:%d], 0 offen" % (RW, RW+3))
        a("s_lshl_b32 s%d, s%d, 6" % (ST1, STG))
        a("s_lshl_b32 s%d, s%d, 3" % (ST2, SHG))
        a("s_add_u32 s%d, s%d, s%d" % (ST1, ST1, ST2))
        a("s_lshl_b32 s%d, s%d, 1" % (ST2, S_WAVE))
        a("s_add_u32 s%d, s%d, s%d" % (ST1, ST1, ST2))
        a("s_mov_b32 exec_hi, 0")
        a("s_mov_b32 exec_lo, 0xfffff")
        a("v_add_u32 v22, s%d, v20" % ST1)
        a("v_mul_u32_u24 v22, 1280, v22")
        a("v_add_u32 v22, v22, v21")
        a("buffer_load_dword v255, v22, s[%d:%d], 0 offen" % (RX, RX+3))
        a("s_mov_b64 exec, -1")
    a("s_setprio %d" % int(_os.environ.get("APRIO0B", "0")))
    a("v_lshrrev_b32 v20, 4, v%d" % VT)
    a("s_lshl_b32 s%d, s%d, 1" % (ST1, STL))
    a("v_add_u32 v20, s%d, v20" % ST1)
    a("v_lshlrev_b32 v20, 10, v20")
    a("v_and_b32 v21, 15, v%d" % VT)
    a("v_lshl_add_u32 v20, v21, 6, v20")
    a("v_bfe_u32 v21, v%d, 2, 2" % VT)
    a("v_xor_b32 v21, v21, v%d" % VH)
    a("v_lshl_add_u32 v20, v21, 4, v20")
    a("v_add_u32 v8, %d, v20" % ST0)
    a("v_xor_b32 v9, 32, v8")
    a("s_cmp_eq_u32 s%d, 0" % STL)
    a("s_movk_i32 s%d, -2048" % ST2)
    a("s_cselect_b32 s%d, 2048, s%d" % (ST1, ST2))
    a("v_add_u32 v10, s%d, v8" % ST1)
    a("v_add_u32 v11, s%d, v9" % ST1)
    dq_of_mq(a, VL, 23, 21, 22)
    a("v_bfe_u32 v20, v%d, 2, 2" % VL)
    a("v_lshl_add_u32 v20, v%d, 3, v20" % VH)
    a("v_mul_u32_u24 v20, 160, v20")
    a("v_lshl_add_u32 v20, v23, 3, v20")
    a("s_mul_i32 s%d, s%d, 40" % (ST1, S_WAVE))
    a("s_add_u32 s%d, s%d, %d" % (ST1, ST1, ST0 + 8192))
    a("v_add_u32 v12, s%d, v20" % ST1)
    for r in range(16, 20): a("v_mov_b32 v%d, 0x3f803f80" % r)
    for r in list(range(48, 80)) + list(range(96, 112)): a("v_mov_b32 v%d, 0" % r)
    a("s_mov_b32 s%d, 0x3f803f80" % SONES)
    a("s_mov_b32 s%d, 0" % SKC)
    a("s_mov_b32 s%d, 0" % SSTG)
    kv_addr_init(a)
    for r in range(CB[0], CB[0]+32): a("v_mov_b32 v%d, 0" % r)
    FS = (20, 32, 208, 220)
    LT = a.uid("QP_top")
    stamp(a, 2)
    stamp(a, 3)
    ntouch = 0 if EXP.get("notouch") else 2
    def reads(ks, b):
        if EXP.get("qnoread"): return
        seg, k1 = ks >> 1, ks & 1
        a("ds_read_b64_tr_b16 v[%d:%d], v12 offset:%d" % (b, b+1, ks*2560))
        a("ds_read_b64_tr_b16 v[%d:%d], v12 offset:%d" % (b+2, b+3, ks*2560+640))
        a("ds_read_b128 v[%d:%d], v%d offset:%d" % (b+4, b+7, 8+k1, seg*4096))
        a("ds_read_b128 v[%d:%d], v%d offset:%d" % (b+8, b+11, 10+k1, seg*4096))
    def q_iter():
        a("s_add_u32 s%d, s%d, 2" % (ST3, SKC))
        a("s_add_u32 s%d, s%d, 2" % (SDST, SSTG))
        a("s_and_b32 s%d, s%d, 3" % (SDST, SDST))
        a("s_mul_i32 s%d, s%d, %d" % (SDST, SDST, ST_STR))
        qproj_dma_prep(a)
        pieces = qproj_dma_pieces()
        if EXP.get("qnodma"): pieces = [[] for _ in pieces]
        for ks in range(4):
            b = FS[ks]
            if ks == 2:
                a("s_waitcnt vmcnt(5)")
                a("s_barrier")
                a("s_cmp_eq_u32 s%d, 3" % SSTG)
                a("s_mov_b32 s%d, %d" % (SDEL, ST_STR))
                a("s_cselect_b32 s%d, %d, s%d" % (SDEL, -3*ST_STR, SDEL))
                for r in range(8, 13): a("v_add_u32 v%d, s%d, v%d" % (r, SDEL, r))
                a("s_add_u32 s%d, s%d, 1" % (SSTG, SSTG))
                a("s_and_b32 s%d, s%d, 3" % (SSTG, SSTG))
                a("s_add_u32 s%d, s%d, 1" % (SKC, SKC))
            reads((ks+2) & 3, FS[(ks+2) & 3])
            a("s_waitcnt lgkmcnt(8)")
            pat = {0: [0, 1, None], 1: [2, 3, 4], 2: [None]*3, 3: [None]*3}[ks]
            ms = [mfma(48, b, b+4, 48), mfma(64, b, b+8, 64), mfma(96, b, 16, 96)]
            for i in range(3):
                if not EXP.get("qnomfma") and not (i == 2 and EXP.get("qnocs")): a(ms[i])
                if pat[i] is not None:
                    for x in pieces[pat[i]]: a(x)
    a("s_waitcnt vmcnt(%d)" % (5 + ntouch))
    a("s_barrier")
    reads(0, FS[0]); reads(1, FS[1])
    a.label(LT)
    q_iter(); q_iter()
    a("s_cmp_lt_u32 s%d, 10" % SKC)
    a("s_cbranch_scc1 %s" % LT)
    if "q_tail" in hooks: hooks["q_tail"](a)
    a("s_waitcnt vmcnt(0) lgkmcnt(0)")
    stamp(a, 4)
    a("s_barrier")
    if "after_qproj_barrier" in hooks: hooks["after_qproj_barrier"](a)
    a("s_waitcnt vmcnt(12)")
    c = f2u(math.log2(math.e) / math.sqrt(20.0))
    a("v_mul_f32 v15, 0x%x, v15" % c)
    a("v_mul_f32 v19, 0x%x, v19" % c)
    for t, (dacc, mean, rc) in enumerate(((48, 14, 15), (64, 18, 19))):
        for r in range(12):
            a("v_fma_f32 v%d, -v%d, v%d, v%d" % (dacc+r, mean, 96+r, dacc+r))
        for r in range(12):
            a("v_mul_f32 v%d, v%d, v%d" % (dacc+r, rc, dacc+r))
        for i in range(4):
            a("v_cvt_pk_bf16_f32 v%d, v%d, v%d" % (Q1[t]+i, dacc+2*i, dacc+2*i+1))
        for i in range(2):
            a("v_cvt_pk_bf16_f32 v%d, v%d, v%d" % (Q2[t]+i, dacc+8+2*i, dacc+9+2*i))
    a("v_cmp_gt_u32 vcc, 32, v%d" % VL)
    a("s_nop 1")
    for t in range(2):
        for i in range(2):
            a("v_cndmask_b32 v%d, 0, v%d, vcc" % (Q2[t]+i, Q2[t]+i))

def kv_addr_init(a):
    a("v_lshlrev_b32 v%d, 4, v%d" % (KAC, VL))
    a("v_lshlrev_b32 v%d, 3, v%d" % (K2C, VT))
    a("v_add_u32 v%d, 8192, v%d" % (K2C, K2C))
    a("v_min_u32 v20, 21, v%d" % VT)
    a("v_lshlrev_b32 v20, 4, v20")
    a("v_mul_u32_u24 v21, 384, v%d" % VH)
    a("v_add_u32 v20, v20, v21")
    a("v_add_u32 v%d, 10240, v20" % VAC)
    for c, n in ((KAC, KAN), (K2C, K2N), (VAC, VAN)):
        a("v_add_u32 v%d, %d, v%d" % (n, KVS1, c))
    a("s_mul_i32 s%d, s%d, 6144" % (ST1, S_WAVE))
    a("v_lshlrev_b32 v%d, 4, v%d" % (VKVD, VL))
    a("v_add_u32 v%d, s%d, v%d" % (VKVD, ST1, VKVD))

def k2reg(kt): return K2[(kt >> 1) & 1] + 2*(kt & 1)

def gen_main(a, hooks):
    a("; ---------- attention main ----------")
    LPASS = a.uid("AT_pass"); LLOOP = a.uid("AT_loop")
    a.label(LPASS)
    for r in list(range(OB[0], OB[0]+32)) + list(range(TB, TB+8)) + list(range(PB, PB+8)) + list(range(V2[1], V2[1]+4)):
        a("v_mov_b32 v%d, 0" % r)
    a("s_waitcnt vmcnt(6)")
    a("s_barrier")
    a("ds_read_b128 v[%d:%d], v%d" % (K1[0], K1[0]+3, KAC))
    a("ds_read2_b64 v[%d:%d], v%d offset0:0 offset1:32" % (K2[0], K2[0]+3, K2C))
    a("ds_read_b128 v[%d:%d], v%d" % (V1[0], V1[0]+3, VAC))
    a("ds_read_b128 v[%d:%d], v%d offset:768" % (V2[0], V2[0]+3, VAC))
    a("s_waitcnt lgkmcnt(2)")
    a(mfma(SB[0], K1[0], Q1[0], CB[0]))
    a(mfma8(SB[0], k2reg(0), Q2[0], SB[0]))
    a("s_mov_b32 s%d, 0" % SC)
    a("s_waitcnt lgkmcnt(0)")
    stamp(a, 5)
    mark(a, 4)
    a.nop(16)
    dmag = kv_dma(a, SKVD, SKVO, hooks.get('ld', ''))
    a.label(LLOOP)
    for n in range(16):
        kt, t = n >> 1, n & 1
        n1 = n + 1; kt1, t1 = n1 >> 1, n1 & 1
        tp = (n - 1) & 1; ktp = (n - 1) >> 1
        ms = [mfma(SB[t1], K1[kt1 & 1], Q1[t1], CB[t1]),
              mfma(OB[tp], V2[ktp & 1], PB+4, OB[tp]),
              mfma8(SB[t1], k2reg(kt1 & 7), Q2[t1], SB[t1]),
              mfma(OB[t], V1[kt & 1], PB, OB[t])]
        for q in range(4):
            a(ms[q])
            extra = []
            nk = kt + 1
            if t == 0 and q == 0:
                extra.append("ds_read_b128 v[%d:%d], v%d offset:%d" % (K1[nk&1], K1[nk&1]+3, KAC if nk < 8 else KAN, (nk & 7)*1024))
            if t == 0 and q == 2:
                extra.append("ds_read_b128 v[%d:%d], v%d offset:%d" % (V1[nk&1], V1[nk&1]+3, VAC if nk < 8 else VAN, (nk & 7)*1536))
            if t == 1 and q == 0:
                extra.append("ds_read_b128 v[%d:%d], v%d offset:%d" % (V2[nk&1], V2[nk&1]+3, VAC if nk < 8 else VAN, (nk & 7)*1536 + 768))
            k2pos = (t == 1 and q == 2 and kt % 2 == 0 and kt != 6) or (n == 14 and q == 1)
            if k2pos:
                pk = (kt + 2) if n != 14 else 8
                b = K2[(pk >> 1) & 1]
                p = (pk & 7) >> 1
                extra.append("ds_read2_b64 v[%d:%d], v%d offset0:%d offset1:%d" % (b, b+3, K2C if pk < 8 else K2N, p*64, p*64+32))
            if q == 3:
                if n == 13:
                    if PROFILE and not EXP.get("chunkt"):
                        extra += ["s_memtime s[78:79]", "s_waitcnt lgkmcnt(0)", "s_mov_b32 s97, s78",
                                  "s_waitcnt vmcnt(0)", "s_memtime s[78:79]", "s_waitcnt lgkmcnt(0)", "s_sub_u32 s97, s78, s97", "s_add_u32 s91, s91, s97", "s_mov_b32 s97, s78",
                                  "s_barrier", "s_memtime s[78:79]", "s_waitcnt lgkmcnt(0)", "s_sub_u32 s97, s78, s97", "s_add_u32 s92, s92, s97"]
                    else:
                        extra += ["s_waitcnt vmcnt(0) lgkmcnt(0)", "s_barrier"]
                else: extra.append("s_waitcnt lgkmcnt(1)")
            di = (n - 14)*4 + q if n >= 14 else -1
            if 1 <= di <= 6 and di != 1 or (n == 14 and q == 0) or False:
                pass
            dma_at = {(14,0): 0, (14,2): 1, (14,3): 2, (15,1): 3, (15,2): 4, (15,3): 5}
            if (n, q) in dma_at:
                extra += dmag[dma_at[(n, q)]]
            if n == 15 and q == 3:
                extra += ["s_xor_b32 s%d, s%d, %d" % (SKVD, SKVD, KVS1), "s_add_u32 s%d, s%d, %d" % (SKVO, SKVO, KV_CHUNK)]
            for x in extra: a(x)
            Tc = TB + 4*(q & 1); Tp = TB + 4*((q+1) & 1)
            pd = PB + (2*q + 6) % 8
            es = ["v_exp_f32 v%d, v%d" % (Tc+e, SB[t]+4*q+e) for e in range(4)]
            cs = ["v_cvt_pk_bf16_f32 v%d, v%d, v%d" % (pd, Tp, Tp+1), "v_cvt_pk_bf16_f32 v%d, v%d, v%d" % (pd+1, Tp+2, Tp+3)]
            for x in (es[0], es[1], cs[0], cs[1], es[2], es[3]): a(x)
    for c, nn in ((KAC, KAN), (K2C, K2N), (VAC, VAN)):
        a("v_xor_b32 v%d, %d, v%d" % (c, KVS1, c))
        a("v_xor_b32 v%d, %d, v%d" % (nn, KVS1, nn))
    if EXP.get("chunkt"):
        a("s_memtime s[78:79]")
        a("s_waitcnt lgkmcnt(0)")
        for k, sl in enumerate((2, 3, 4, 10, 11, 12, 13, 14)):
            a("s_cmp_eq_u32 s%d, %d" % (SC, k))
            a("s_cselect_b32 s%d, s78, s%d" % (80+sl, 80+sl))
    a("s_add_u32 s%d, s%d, 1" % (SC, SC))
    a("s_cmp_lt_u32 s%d, 8" % SC)
    a("s_cbranch_scc1 %s" % LLOOP)
    stamp(a, 6)
    a("v_cvt_pk_bf16_f32 v%d, v%d, v%d" % (PB+6, TB+4, TB+5))
    a("v_cvt_pk_bf16_f32 v%d, v%d, v%d" % (PB+7, TB+6, TB+7))
    a("s_nop 1")
    a(mfma(OB[1], V2[1], PB+4, OB[1]))
    a.nop(18)
    return LPASS

def gen_att(a, hooks=None):
    hooks = hooks or {}
    a("; ================= A-WG =================")
    a("s_setprio %d" % int(_os.environ.get("APRIO0", "3")))
    if EXP.get("early"): a("s_memtime s[48:49]")
    a("s_and_b32 s%d, s2, 7" % STG)
    a("s_lshr_b32 s%d, s2, 3" % ST1)
    a("s_and_b32 s%d, s%d, 7" % (SHG, ST1))
    a("s_lshr_b32 s%d, s%d, 3" % (ST1, ST1))
    a("s_lshl_b32 s%d, s%d, 3" % (ST1, ST1))
    a("s_add_u32 s%d, s%d, s%d" % (STG, STG, ST1))
    wave_lane(a, VL)
    a("v_lshrrev_b32 v%d, 5, v%d" % (VH, VL))
    a("v_and_b32 v%d, 31, v%d" % (VT, VL))
    a("s_nop 2")
    a("s_lshl_b32 s%d, s%d, 2" % (SHEAD, SHG))
    a("s_add_u32 s%d, s%d, s%d" % (SHEAD, SHEAD, S_WAVE))
    a("s_and_b32 s%d, s%d, 1" % (STL, S_WAVE))
    a("s_lshl_b32 s%d, s%d, 1" % (STTA, STG))
    a("s_add_u32 s%d, s%d, 1" % (STTB, STTA))
    a("s_sub_u32 s%d, s%d, s%d" % (STTB, STTB, STL))
    a("s_add_u32 s%d, s%d, s%d" % (STTA, STTA, STL))
    def after_q(a):
        if "wait_kv" in hooks: hooks["wait_kv"](a)
        ld = hooks.get("ld", "")
        srd(a, RO, P_WS, STAT_SIZE, STAT_OFF)
        a("v_lshlrev_b32 v20, 3, v%d" % VT)
        a("s_lshl_b32 s%d, s%d, 8" % (ST1, STTA))
        a("s_lshl_b32 s%d, s%d, 8" % (ST2, STTB))
        a("buffer_load_dwordx2 v[14:15], v20, s[%d:%d], s%d offen%s" % (RO, RO+3, ST1, ld))
        a("buffer_load_dwordx2 v[18:19], v20, s[%d:%d], s%d offen%s" % (RO, RO+3, ST2, ld))
        for (dst, off) in ((KVS0, 0), (KVS1, KV_CHUNK)):
            a("s_mov_b32 s%d, %d" % (SKVD, dst))
            a("s_mov_b32 s%d, %d" % (SKVO, off))
            for g in kv_dma(a, SKVD, SKVO, ld):
                for x in g: a(x)
        a("s_mov_b32 s%d, %d" % (SKVD, KVS0))
        a("s_mov_b32 s%d, %d" % (SKVO, 2*KV_CHUNK))
    h2 = dict(hooks); h2["after_qproj_barrier"] = after_q
    gen_qproj(a, h2)
    a("s_mov_b32 s%d, 0" % SPASS)
    a("s_setprio %d" % int(_os.environ.get("APRIO1", "0")))
    LPASS = gen_main(a, hooks)
    LOK = a.uid("AT_ok"); LMAXC = a.uid("AT_mc"); LMAXT = a.uid("AT_mt"); LNC = a.uid("AT_nochk")
    OL = 57344
    for t in range(2):
        l = 20 + t
        a("v_mov_b32 v22, v%d" % (OB[t]+8))
        a("v_mov_b32 v%d, v%d" % (l, OB[t]+8))
        a("s_nop 1")
        a("v_permlane32_swap_b32 v22, v%d" % l)
    a("s_mov_b32 s%d, 0" % ST1)
    a("s_cmp_lg_u32 s%d, 0" % SPASS)
    a("s_cbranch_scc1 %s" % LNC)
    a("v_mov_b32 v24, 0")
    a("v_mov_b32 v25, 0")
    a("v_mov_b32 v26, 0")
    for t in range(2):
        if EXP.get("nopkfma"):
            for r in range(12): a("v_fma_f32 v24, v%d, 0, v24" % (OB[t]+r))
            continue
        for r in range(0, 12, 2):
            a("v_pk_fma_f32 v[24:25], v[%d:%d], v[26:27], v[24:25] op_sel_hi:[1,0,1]" % (OB[t]+r, OB[t]+r+1))
    a("v_min_f32 v23, v20, v21")
    a("v_max_f32 v22, v20, v21")
    a("v_add_f32 v24, v24, v25")
    a("v_add_f32 v24, v24, v22")
    a("v_cmp_nle_f32 vcc, 0x21800000, v23")
    a("s_mov_b32 s%d, 0x71800000" % ST2)
    a("v_cmp_nge_f32 s[74:75], s%d, v24" % ST2)
    a("s_nop 1")
    a("s_or_b64 vcc, vcc, s[74:75]")
    a("s_cmp_lg_u64 vcc, 0")
    a("s_cselect_b32 s%d, 1, 0" % ST1)
    a.label(LNC)
    a("v_rcp_f32 v22, v20")
    a("v_rcp_f32 v23, v21")
    a("v_mov_b32 v24, s%d" % ST1)
    a("s_lshl_b32 s%d, s%d, 2" % (ST2, S_WAVE))
    a("s_add_u32 s%d, s%d, %d" % (ST2, ST2, EXF))
    a("v_mov_b32 v25, s%d" % ST2)
    a("ds_write_b32 v25, v24")
    a("v_lshlrev_b32 v26, 3, v%d" % VT)
    a("v_lshl_add_u32 v26, v%d, 8, v26" % VH)
    a("s_mul_i32 s%d, s%d, 1280" % (ST2, S_WAVE))
    a("s_mul_i32 s%d, s%d, 5120" % (ST3, STL))
    a("s_add_u32 s%d, s%d, s%d" % (ST2, ST2, ST3))
    a("s_add_u32 s%d, s%d, %d" % (ST2, ST2, OL))
    a("v_add_u32 v27, s%d, v26" % ST2)
    a("s_mul_i32 s%d, s%d, -10240" % (ST3, STL))
    a("s_add_u32 s%d, s%d, 5120" % (ST3, ST3))
    a("v_add_u32 v28, s%d, v27" % ST3)
    for t in range(2):
        for r in range(12): a("v_mul_f32 v%d, v%d, v%d" % (OB[t]+r, 22+t, OB[t]+r))
        b = 32 + 8*t
        for i in range(6):
            a("v_cvt_pk_bf16_f32 v%d, v%d, v%d" % (b+i, OB[t]+2*i, OB[t]+2*i+1))
        a("ds_write_b64 v%d, v[%d:%d]" % (27+t, b, b+1))
        a("ds_write_b64 v%d, v[%d:%d] offset:512" % (27+t, b+2, b+3))
        a("s_mov_b32 exec_hi, 0")
        a("ds_write_b64 v%d, v[%d:%d] offset:1024" % (27+t, b+4, b+5))
        a("s_mov_b64 exec, -1")
    a("s_waitcnt lgkmcnt(0)")
    a("s_barrier")
    a("v_mov_b32 v23, %d" % EXF)
    a("ds_read_b128 v[48:51], v23")
    a("v_lshlrev_b32 v26, 3, v%d" % VT)
    a("v_lshl_add_u32 v26, v%d, 9, v26" % VH)
    a("v_add_u32 v26, %d, v26" % OL)
    for m in range(3):
        a("s_add_u32 s%d, s%d, %d" % (ST1, S_WAVE, 4*m))
        a("s_cmp_ge_u32 s%d, 5" % ST1)
        a("s_cselect_b32 s%d, 1, 0" % ST2)
        a("s_mul_i32 s%d, s%d, 5" % (ST3, ST2))
        a("s_sub_u32 s%d, s%d, s%d" % (ST3, ST1, ST3))
        a("s_mul_i32 s74, s%d, 5120" % ST2)
        a("s_lshl_b32 s75, s%d, 10" % ST3)
        a("s_add_u32 s74, s74, s75")
        a("v_add_u32 v27, s74, v26")
        a("ds_read2_b64 v[%d:%d], v27 offset0:0 offset1:32" % (32+4*m, 35+4*m))
        a("s_lshl_b32 s74, s%d, 1" % STG)
        a("s_add_u32 s74, s74, s%d" % ST2)
        a("s_mul_i32 s74, s74, 40")
        a("s_mul_i32 s75, s%d, 5" % SHG)
        a("s_add_u32 s74, s74, s75")
        a("s_add_u32 s74, s74, s%d" % ST3)
        a("s_lshl_b32 s%d, s74, 10" % (98+m))
        if m == 2:
            a("s_cmp_lt_u32 s%d, 10" % ST1)
            a("s_cselect_b32 s100, s100, 0x40000000")
    a("s_waitcnt lgkmcnt(0)")
    a("v_or_b32 v48, v48, v49")
    a("v_or3_b32 v48, v48, v50, v51")
    a("s_nop 0")
    a("v_readfirstlane_b32 s%d, v48" % ST1)
    a("s_nop 3")
    a("s_cmp_eq_u32 s%d, 0" % ST1)
    a("s_cbranch_scc1 %s" % LOK)
    a("v_mov_b32 v20, 0xff800000")
    a("v_mov_b32 v21, 0xff800000")
    a("s_mov_b32 s%d, 0" % SC)
    a.label(LMAXC)
    a("s_barrier")
    a("s_mov_b32 s%d, %d" % (SKVD, KVS0))
    a("s_mul_i32 s%d, s%d, %d" % (SKVO, SC, KV_CHUNK))
    for g in kv_dma(a, SKVD, SKVO, hooks.get('ld', '')):
        for x in g: a(x)
    a("s_waitcnt vmcnt(0)")
    a("s_barrier")
    a("v_mov_b32 v22, v%d" % KAC)
    a("v_mov_b32 v23, v%d" % K2C)
    a("s_mov_b32 s%d, 0" % SKC)
    a.label(LMAXT)
    a("ds_read_b128 v[%d:%d], v22" % (K1[0], K1[0]+3))
    a("ds_read_b64 v[%d:%d], v23" % (K2[0], K2[0]+1))
    a("s_waitcnt lgkmcnt(0)")
    for t in range(2):
        a(mfma(SB[t], K1[0], Q1[t], None))
        a(mfma8(SB[t], K2[0], Q2[t], SB[t]))
    a.nop(18)
    for t in range(2):
        for r in range(0, 16, 2):
            a("v_max3_f32 v%d, v%d, v%d, v%d" % (20+t, SB[t]+r, SB[t]+r+1, 20+t))
    a("v_add_u32 v22, 1024, v22")
    a("v_add_u32 v23, 256, v23")
    a("s_add_u32 s%d, s%d, 1" % (SKC, SKC))
    a("s_cmp_lt_u32 s%d, 8" % SKC)
    a("s_cbranch_scc1 %s" % LMAXT)
    a("s_add_u32 s%d, s%d, 1" % (SC, SC))
    a("s_cmp_lt_u32 s%d, 8" % SC)
    a("s_cbranch_scc1 %s" % LMAXC)
    for t in range(2):
        a("v_mov_b32 v22, v%d" % (20+t))
        a("v_mov_b32 v23, v%d" % (20+t))
        a("s_nop 1")
        a("v_permlane32_swap_b32 v22, v23")
        a("s_nop 1")
        a("v_max_f32 v22, v22, v23")
        a("v_sub_f32 v22, 0, v22")
        for r in range(16): a("v_mov_b32 v%d, v22" % (CB[t]+r))
    a("s_barrier")
    a("s_mov_b32 s%d, %d" % (SKVD, KVS0))
    a("s_mov_b32 s%d, 0" % SKVO)
    for g in kv_dma(a, SKVD, SKVO, hooks.get('ld', '')):
        for x in g: a(x)
    a("s_mov_b32 s%d, %d" % (SKVD, KVS1))
    a("s_mov_b32 s%d, %d" % (SKVO, KV_CHUNK))
    for g in kv_dma(a, SKVD, SKVO, hooks.get('ld', '')):
        for x in g: a(x)
    a("s_mov_b32 s%d, %d" % (SKVD, KVS0))
    a("s_mov_b32 s%d, %d" % (SKVO, 2*KV_CHUNK))
    a("s_mov_b32 s%d, 1" % SPASS)
    a("s_branch %s" % LPASS)
    a.label(LOK)
    srd(a, RO, P_WS, OQ_SIZE, OQ_OFF)
    a("v_lshlrev_b32 v%d, 4, v%d" % (VOST, VL))
    st = hooks.get("st", "")
    for m in range(3):
        a("buffer_store_dwordx4 v[%d:%d], v%d, s[%d:%d], s%d offen%s" % (32+4*m, 35+4*m, VOST, RO, RO+3, 98+m, st))
    if "o_done" in hooks: hooks["o_done"](a)
    stamp(a, 7)
    a("s_waitcnt vmcnt(0)") if PROFILE else None
    stamp(a, 8); stamp_rt(a, 9)
    stamp_flush(a)
```

```python
from common import *
import common, re
RW2, RU, RWO, RO, RXO = R0, R1, R2, R3, R4
SSG, SDG, ST1, ST2, ST3, SCH, SWOFF, SUOFF, SRING = 35, 36, 60, 61, 62, 63, 64, 65, 66
ACC = 128
def acc(dt, st): return ACC + 32*dt + 16*st
UB = 32; FB = 112; OBF = 32
WREG = 20480
import os
NS = int(os.environ.get('M2NS', '2'))

RMAP = {2:224, 3:225, 4:226, 5:227, 6:228, 7:229, 10:230, 11:231, 12:232, 13:233, 14:234, 15:235, 16:236, 17:237}
class Remap:
    def __init__(self, a): self.a = a
    def __call__(self, s):
        self.a(re.sub(r"\bv(\d+)\b", lambda m: "v%d" % RMAP.get(int(m.group(1)), int(m.group(1))), s))
    def __getattr__(self, n): return getattr(self.a, n)

def gen_m2_setup(a0):
    a = Remap(a0)
    a("s_and_b32 s%d, s%d, 7" % (ST1, S_J))
    a("s_lshr_b32 s%d, s%d, 3" % (ST2, S_J))
    a("s_mul_hi_u32 s%d, s%d, 0x24924925" % (ST3, ST2))
    a("s_mul_i32 s%d, s%d, 7" % (SDG, ST3))
    a("s_sub_u32 s%d, s%d, s%d" % (SDG, ST2, SDG))
    a("s_lshl_b32 s%d, s%d, 3" % (ST3, ST3))
    a("s_add_u32 s%d, s%d, s%d" % (SSG, ST1, ST3))
    wave_lane(a, 1)
    a("v_lshrrev_b32 v8, 5, v1")
    a("v_and_b32 v9, 31, v1")
    a("s_mul_i32 s%d, s%d, %d" % (SRING, S_WAVE, WREG))
    a("s_lshl_b32 s%d, s%d, 6" % (ST1, SSG))
    a("v_add_u32 v16, s%d, v9" % ST1)
    a("v_lshlrev_b32 v30, 1, v16")
    a("s_movk_i32 s%d, 1280" % ST2)
    a("v_mul_lo_u32 v16, v16, s%d" % ST2)
    a("s_mul_i32 s%d, s%d, 192" % (ST1, SDG))
    a("s_lshl_b32 s%d, s%d, 4" % (ST2, S_WAVE))
    a("s_add_u32 s%d, s%d, s%d" % (ST1, ST1, ST2))
    a("v_lshl_add_u32 v16, v8, 3, v16")
    a("v_add_u32 v16, s%d, v16" % ST1)
    a("v_add_u32 v17, %d, v16" % (32*1280))
    a("v_lshrrev_b32 v2, 3, v1")
    a("s_mul_i32 s%d, s%d, 384" % (ST1, S_WAVE))
    a("v_add_u32 v2, s%d, v2" % ST1)
    a("v_lshlrev_b32 v2, 12, v2")
    a("v_bfe_u32 v3, v1, 4, 1")
    a("v_lshlrev_b32 v3, 2, v3")
    a("v_and_b32 v4, 7, v1")
    a("v_xor_b32 v3, v3, v4")
    a("v_lshl_add_u32 v2, v3, 4, v2")
    a("s_lshl_b32 s%d, s%d, 7" % (ST1, SSG))
    a("v_add_u32 v2, s%d, v2" % ST1)
    a("s_lshl_b32 s%d, s%d, 3" % (ST1, S_WAVE))
    a("v_add_u32 v3, s%d, v9" % ST1)
    a("v_and_b32 v3, 31, v3")
    a("v_lshl_add_u32 v3, v8, 5, v3")
    a("v_lshlrev_b32 v10, 4, v3")
    a("s_mul_i32 s%d, s%d, 3" % (ST1, SDG))
    a("s_mul_i32 s%d, s%d, 24" % (ST2, S_WAVE))
    for dt in range(3):
        a("s_add_u32 s%d, s%d, %d" % (ST3, ST1, dt))
        a("s_min_u32 s%d, s%d, 19" % (ST3, ST3))
        a("s_mul_i32 s%d, s%d, 96" % (ST3, ST3))
        a("s_add_u32 s%d, s%d, s%d" % (ST3, ST3, ST2))
        a("s_lshl_b32 s%d, s%d, 10" % (ST3, ST3))
        a("v_add_u32 v%d, s%d, v10" % (3+dt, ST3))
    a("v_bfe_u32 v11, v1, 2, 2")
    a("v_lshl_add_u32 v10, v8, 2, v11")
    a("v_lshlrev_b32 v10, 7, v10")
    a("v_bfe_u32 v12, v1, 4, 1")
    a("v_bfe_u32 v13, v1, 1, 1")
    a("v_lshl_add_u32 v12, v12, 1, v13")
    a("v_lshrrev_b32 v13, 1, v11")
    a("v_lshlrev_b32 v13, 2, v13")
    a("v_xor_b32 v12, v12, v13")
    a("v_lshl_add_u32 v10, v12, 4, v10")
    a("v_and_b32 v12, 1, v1")
    a("v_lshl_add_u32 v10, v12, 3, v10")
    a("v_add_u32 v6, s%d, v10" % SRING)
    a("v_xor_b32 v7, 64, v6")
    a("v_lshl_add_u32 v10, v8, 3, v11")
    a("v_mul_u32_u24 v10, 192, v10")
    a("v_and_b32 v12, 3, v1")
    a("v_bfe_u32 v13, v1, 4, 1")
    a("v_lshl_add_u32 v12, v13, 2, v12")
    a("s_lshl_b32 s%d, s%d, 1" % (ST1, S_WAVE))
    a("v_add_u32 v12, s%d, v12" % ST1)
    a("v_and_b32 v12, 7, v12")
    a("v_lshl_add_u32 v10, v12, 3, v10")
    a("v_add_u32 v13, s%d, v10" % SRING)
    a("s_mul_i32 s%d, s%d, 160" % (ST1, S_WAVE))
    a("s_mul_i32 s%d, s%d, 192" % (ST2, SDG))
    a("s_movk_i32 s%d, 1280" % ST3)
    for m in range(3):
        a("v_add_u32 v112, %d, v1" % (64*m))
        a("v_mul_u32_u24 v113, 5462, v112")
        a("v_lshrrev_b32 v113, 16, v113")
        a("v_mul_u32_u24 v114, 12, v113")
        a("v_sub_u32 v114, v112, v114")
        a("v_add_u32 v113, s%d, v113" % ST1)
        a("v_mul_lo_u32 v113, v113, s%d" % ST3)
        a("v_lshl_add_u32 v113, v114, 4, v113")
        a("v_add_u32 v%d, s%d, v113" % (10+m, ST2))
    a("v_lshlrev_b32 v112, 4, v1")
    a("s_lshl_b32 s%d, s%d, 1" % (ST1, SSG))
    a("s_mul_i32 s%d, s%d, 40" % (ST1, ST1))
    a("s_mul_i32 s%d, s%d, 10" % (ST2, S_WAVE))
    a("s_add_u32 s%d, s%d, s%d" % (ST1, ST1, ST2))
    a("s_lshl_b32 s%d, s%d, 10" % (ST1, ST1))
    a("v_add_u32 v14, s%d, v112" % ST1)
    a("v_add_u32 v15, %d, v14" % (40*1024))

def gen_m2(a0, hooks=None, setup_done=False):
    hooks = hooks or {}
    if not setup_done: gen_m2_setup(a0)
    a = Remap(a0)
    LEND = a.uid("M2_end")
    a("; ================= M2 =================")
    a("s_and_b32 s%d, s%d, 7" % (ST1, S_J))
    a("s_lshr_b32 s%d, s%d, 3" % (ST2, S_J))
    a("s_cmp_ge_u32 s%d, 28" % ST2)
    a("s_cbranch_scc1 %s" % LEND)
    a("s_mul_hi_u32 s%d, s%d, 0x24924925" % (ST3, ST2))
    a("s_mul_i32 s%d, s%d, 7" % (SDG, ST3))
    a("s_sub_u32 s%d, s%d, s%d" % (SDG, ST2, SDG))
    a("s_lshl_b32 s%d, s%d, 3" % (ST3, ST3))
    a("s_add_u32 s%d, s%d, s%d" % (SSG, ST1, ST3))
    wave_lane(a, 1)
    a("s_mul_i32 s%d, s%d, %d" % (SRING, S_WAVE, WREG))
    srd(a, RW2, P_W2, F*S*2)
    srd(a, RU, P_WS, UF_SIZE, UF_OFF)
    srd(a, RWO, P_WO, D*D*2)
    srd(a, RXO, P_X, S*D*2)
    for dt in range(3):
        for st in range(2):
            b = 18 + 4*dt + 2*st
            a("buffer_load_dwordx2 v[%d:%d], v%d, s[%d:%d], 0 offen offset:%d" % (b, b+1, 16+st, RXO, RXO+3, 64*dt))
    srd(a, RXO, P_B2, S*2)
    a("buffer_load_ushort v31, v30, s[%d:%d], 0 offen offset:64" % (RXO, RXO+3))
    a("buffer_load_ushort v30, v30, s[%d:%d], 0 offen" % (RXO, RXO+3))
    ld = hooks.get("ld", "")
    def w_piece(slot, m):
        return ["s_add_u32 m0, s%d, %d" % (SRING, slot*4096 + m*1024),
                "s_add_u32 s%d, s%d, %d" % (ST1, SWOFF, m*8*4096),
                "buffer_load_dwordx4 v2, s[%d:%d], s%d offen lds" % (RW2, RW2+3, ST1)]
    def u_piece(slot, kk, dt):
        b = UB + 24*slot + 12*kk + 4*dt
        return ["buffer_load_dwordx4 v[%d:%d], v%d, s[%d:%d], s%d offen offset:%d%s" % (b, b+3, 3+dt, RU, RU+3, SUOFF, kk*1024, ld)]
    def issue_w(slot):
        for m in range(4):
            for x in w_piece(slot, m): a(x)
        a("s_add_u32 s%d, s%d, %d" % (SWOFF, SWOFF, 32*4096))
    def issue_u(slot):
        for kk in range(2):
            for dt in range(3):
                for x in u_piece(slot, kk, dt): a(x)
        a("s_add_u32 s%d, s%d, 2048" % (SUOFF, SUOFF))
    def compute(slot, refill, first=False):
        for kk in range(2):
            for st in range(2):
                b = FB + 8*kk + 4*st
                for rd in range(2):
                    a("ds_read_b64_tr_b16 v[%d:%d], v%d offset:%d" % (b+2*rd, b+2*rd+1, 6+st, slot*4096 + kk*2048 + rd*1024))
        def M(kk, dt, st): a(mfma(acc(dt, st), UB + 24*slot + 12*kk + 4*dt, FB + 8*kk + 4*st, None if (first and kk == 0) else acc(dt, st)))
        def E(lst):
            if refill:
                for x in lst: a(x)
        a("s_waitcnt lgkmcnt(4)")
        for dt in range(3):
            M(0, dt, 0); M(0, dt, 1); E(u_piece(slot, 0, dt))
        a("s_waitcnt lgkmcnt(0)")
        M(1,0,0); E(w_piece(slot,0)); M(1,0,1); E(u_piece(slot,1,0))
        M(1,1,0); E(w_piece(slot,1)); M(1,1,1); E(u_piece(slot,1,1))
        M(1,2,0); E(w_piece(slot,2)); M(1,2,1); E(w_piece(slot,3)); E(u_piece(slot,1,2))
        E(["s_add_u32 s%d, s%d, %d" % (SWOFF, SWOFF, 32*4096), "s_add_u32 s%d, s%d, 2048" % (SUOFF, SUOFF)])
    a("s_mov_b32 s%d, 0" % SWOFF)
    a("s_mov_b32 s%d, 0" % SUOFF)
    for sl in range(NS): issue_w(sl)
    if "before_u" in hooks: hooks["before_u"](a)
    stamp(a, 7)
    for sl in range(NS): issue_u(sl)
    a("s_setprio %d" % int(os.environ.get("G2PRIO", "0")))
    a("s_mov_b32 s%d, 0" % SCH)
    for sl in range(NS):
        a("s_waitcnt vmcnt(%d)" % (6*(NS-1-sl) + 10*sl))
        compute(sl, True, sl == 0)
    LL = a.uid("M2_loop")
    a.label(LL)
    for sl in range(NS):
        a("s_waitcnt vmcnt(%d)" % (10*(NS-1)))
        compute(sl, True)
    a("s_add_u32 s%d, s%d, 1" % (SCH, SCH))
    a("s_cmp_lt_u32 s%d, %d" % (SCH, 12//NS - 2))
    a("s_cbranch_scc1 %s" % LL)
    for sl in range(NS):
        a("s_waitcnt vmcnt(%d)" % (10*(NS-1-sl)))
        compute(sl, False)
    stamp(a, 8)
    a("s_setprio 2")
    def wo_issue(ks):
        slot = ks % 6
        a("s_mov_b32 s%d, %d" % (ST1, ks*16*1280))
        for m in range(3):
            a("s_add_u32 m0, s%d, %d" % (SRING, slot*3072 + m*1024))
            a("s_nop 0")
            a("buffer_load_dwordx4 v%d, s[%d:%d], s%d offen lds" % (10+m, RWO, RWO+3, ST1))
    for ks in range(6): wo_issue(ks)
    if "before_o" in hooks: hooks["before_o"](a)
    srd(a, RO, P_WS, OQ_SIZE, OQ_OFF)
    for ks in range(10):
        a("s_mov_b32 s%d, %d" % (ST1, ks*1024))
        for st in range(2):
            b = OBF + 8*ks + 4*st
            a("buffer_load_dwordx4 v[%d:%d], v%d, s[%d:%d], s%d offen%s" % (b, b+3, 14+st, RO, RO+3, ST1, ld))
    for ks in range(10):
        slot = ks % 6
        if ks <= 5: a("s_waitcnt vmcnt(%d)" % (2*(9-ks) + 3*min(ks, 4)))
        else:       a("s_waitcnt vmcnt(%d)" % (3*(9-ks)))
        for dt in range(3):
            for rd in range(2):
                b = FB + 4*dt + 2*rd
                a("ds_read_b64_tr_b16 v[%d:%d], v13 offset:%d" % (b, b+1, slot*3072 + rd*768 + dt*64))
        for dt in range(3):
            a("s_waitcnt lgkmcnt(%d)" % (2*(2-dt)))
            for st in range(2):
                a(mfma(acc(dt, st), FB + 4*dt, OBF + 8*ks + 4*st, acc(dt, st)))
        if ks < 4: wo_issue(ks+6)
    stamp(a, 9)
    a.nop(12)
    a("s_barrier")
    a("v_lshlrev_b32 v2, 4, v1")
    for ip in range(1, 4):
        a("s_add_u32 s%d, s%d, %d" % (ST1, S_WAVE, ip))
        a("s_and_b32 s%d, s%d, 3" % (ST1, ST1))
        a("s_mul_i32 s%d, s%d, 18432" % (ST1, ST1))
        a("v_add_u32 v3, s%d, v2" % ST1)
        for t in range(6):
            b = ACC + 16*t + 4*ip
            a("ds_write_b128 v3, v[%d:%d] offset:%d" % (b, b+3, (ip-1)*6144 + t*1024))
    a("s_waitcnt lgkmcnt(0)")
    a("s_barrier")
    a("s_mul_i32 s%d, s%d, 18432" % (ST1, S_WAVE))
    a("v_add_u32 v3, s%d, v2" % ST1)
    for sl in range(3):
        for t in range(6):
            b = 32 + 24*sl + 4*t
            a("ds_read_b128 v[%d:%d], v3 offset:%d" % (b, b+3, sl*6144 + t*1024))
    a("v_lshlrev_b32 v30, 16, v30")
    a("v_lshlrev_b32 v31, 16, v31")
    srd(a, RXO, P_OUT, S*D*2)
    a("s_waitcnt lgkmcnt(0)")
    LSK = a.uid("M2_skip")
    for dt in range(3):
        if dt == 2:
            a("s_cmp_eq_u32 s%d, 6" % SDG)
            a("s_cbranch_scc1 %s" % LSK)
        for st in range(2):
            t = 2*dt + st
            c = ACC + 16*t
            xb = 18 + 4*dt + 2*st
            for j in range(4):
                a("v_add_f32 v%d, v%d, v%d" % (32+4*t+j, 32+4*t+j, 56+4*t+j))
                a("v_add_f32 v%d, v%d, v%d" % (c+j, c+j, 80+4*t+j))
            for j in range(4):
                a("v_add_f32 v%d, v%d, v%d" % (c+j, c+j, 32+4*t+j))
            a("v_lshlrev_b32 v112, 16, v%d" % xb)
            a("v_and_b32 v113, 0xffff0000, v%d" % xb)
            a("v_lshlrev_b32 v114, 16, v%d" % (xb+1))
            a("v_and_b32 v115, 0xffff0000, v%d" % (xb+1))
            for j in range(4):
                a("v_add_f32 v%d, v%d, v%d" % (112+j, 112+j, 30+st))
            for j in range(4):
                a("v_add_f32 v%d, v%d, v%d" % (c+j, c+j, 112+j))
            a("v_cvt_pk_bf16_f32 v%d, v%d, v%d" % (c+4, c, c+1))
            a("v_cvt_pk_bf16_f32 v%d, v%d, v%d" % (c+5, c+2, c+3))
            a("buffer_store_dwordx2 v[%d:%d], v%d, s[%d:%d], 0 offen offset:%d%s" % (c+4, c+5, 16+st, RXO, RXO+3, 64*dt, hooks.get("ost", "")))
    a.label(LSK)
    a.label(LEND)
    stamp(a, 10)
```

```python
import sys, os
import common
common.PROFILE = bool(os.environ.get("PROF"))
from common import *
EXP = common.EXP
import m0

KD = """.section .rodata,"a"
.p2align 6
.amdhsa_kernel {name}
  .amdhsa_next_free_vgpr {nv}
  .amdhsa_next_free_sgpr 102
  .amdhsa_accum_offset {nv}
  .amdhsa_group_segment_fixed_size 0
  .amdhsa_kernarg_size 104
  .amdhsa_user_sgpr_count 2
  .amdhsa_user_sgpr_kernarg_segment_ptr 1
  .amdhsa_system_sgpr_workgroup_id_x 1
.end_amdhsa_kernel
.text
"""
def PROFILE_ON(): return common.PROFILE
def kernel_head(a, name):
    a.raw(".globl %s" % name)
    a.raw(".p2align 8")
    a.raw(".type %s,@function" % name)
    a.label(name)

def build_split(parts):
    a = Asm()
    launches = []
    body = Asm()
    body._uid = 0
    if "k1" in parts:
        name = "mixa_k1_kernel"
        kernel_head(body, name)
        body("s_cmp_ge_u32 s2, 256")
        body("s_cbranch_scc1 %s_end" % name)
        load_kernargs(body)
        body("s_mov_b32 s%d, s2" % S_J)
        m0.gen_m0(body, name + "_end", dict(args=lambda a: a("s_waitcnt lgkmcnt(0)")))
        body.label(name + "_end")
        body("s_endpgm")
        body.raw(KD.format(name=name, nv=256))
        launches.append((name, 256, 256, 81920))
    if "k2" in parts:
        import att, m1
        name = "mixa_k2_kernel"
        kernel_head(body, name)
        body("s_cmp_ge_u32 s2, 512")
        body("s_cbranch_scc1 %s_end" % name)
        load_kernargs(body)
        body("s_cmp_ge_u32 s2, 256")
        body("s_cbranch_scc1 %s_m" % name)
        att.gen_att(body)
        body("s_branch %s_end" % name)
        body.label(name + "_m")
        body("s_sub_u32 s%d, s2, 256" % S_J)
        body("s_waitcnt lgkmcnt(0)")
        m1.gen_m1(body)
        body.label(name + "_end")
        body("s_endpgm")
        body.raw(KD.format(name=name, nv=256))
        launches.append((name, 512, 256, 81920))
    if "k3" in parts:
        import m2
        name = "mixa_k3_kernel"
        kernel_head(body, name)
        body("s_cmp_ge_u32 s2, 256")
        body("s_cbranch_scc1 %s_end" % name)
        load_kernargs(body)
        body("s_mov_b32 s%d, s2" % S_J)
        body("s_waitcnt lgkmcnt(0)")
        m2.gen_m2(body)
        body.label(name + "_end")
        body("s_endpgm")
        body.raw(KD.format(name=name, nv=256))
        launches.append((name, 256, 256, 81920))
    return launches, body.text()

def build_fused():
    import att, m1, m2
    name = "parallel_sum__grouped_kv_mqa__mixer_token_mlp__prompt_kernel"
    a = Asm()
    kernel_head(a, name)
    LM, LE = name + "_m", name + "_end"
    a("s_cmp_ge_u32 s2, 512")
    a("s_cbranch_scc1 %s" % LE)
    if common.PROFILE or common.DBGT: a("s_memrealtime s[96:97]")
    load_kernargs(a)
    if not EXP.get("nocodepf"):
        LPC = a.uid("PC")
        a("s_getpc_b64 s[76:77]")
        a.label(LPC)
        a("s_lshr_b32 s78, s2, 3")
        a("s_lshl_b32 s78, s78, 2")
        a("v_lshrrev_b32 v252, 6, v0")
        a("v_add_u32 v252, s78, v252")
        a("v_lshlrev_b32 v252, 7, v252")
        a("v_min_u32 v252, %s_end-%s, v252" % (name, LPC))
        a("global_load_dword v253, v252, s[76:77]")
    a("s_cmp_ge_u32 s2, 256")
    a("s_cbranch_scc1 %s" % LM)
    def q_tail(a):
        mark(a, 1, src=96)
        mark(a, 2)
        init_load(a, 254)
    def wait_kv(a):
        if EXP.get("aonly"): return
        LS = a.uid("A_ic")
        a("s_cmp_lg_u32 s%d, 0" % S_WAVE)
        a("s_cbranch_scc1 %s" % LS)
        init_check(a, 254)
        a.label(LS)
        wait_phase0(a, 20)
        stamp(a, 10)
        mark(a, 3)
    def o_done(a):
        mark(a, 5)
        a("s_waitcnt vmcnt(0)")
        a("s_barrier")
        a("s_cmp_lg_u32 s%d, 0" % S_WAVE)
        LS = a.uid("A_noarr")
        a("s_cbranch_scc1 %s" % LS)
        a("s_add_u32 s76, s%d, %d" % (P_WS, FO_OFF))
        a("s_addc_u32 s77, s%d, 0" % (P_WS+1))
        a("s_lshl_b32 s64, s%d, 8" % att.STG)
        arrive(a, 76, 64, 20)
        a.label(LS)
    att.gen_att(a, dict(wait_kv=wait_kv, q_tail=q_tail, o_done=o_done, st=" sc1", ld=" sc1"))
    mark_flush(a, 37, [1, 2, 3, 4, 5, 13, 14])
    a("s_branch %s" % LE)
    a.label(LM)
    if EXP.get("aonly"): a("s_endpgm")
    a("s_sub_u32 s%d, s2, 256" % S_J)
    a("s_setprio %d" % int(os.environ.get("MPRIO", "2")))
    def m_args(a):
        a("s_waitcnt lgkmcnt(0)")
        stamp_init(a); stamp_rt(a, 0); stamp(a, 1)
        LZ = a.uid("M_nozero")
        a("s_cmp_lg_u32 s%d, 0" % S_J)
        a("s_cbranch_scc1 %s" % LZ)
        a("v_cmp_gt_u32 vcc, 64, v0")
        a("s_nop 1")
        a("s_cmp_eq_u64 vcc, 0")
        a("s_cbranch_scc1 %s" % LZ)
        a("v_lshlrev_b32 v250, 8, v0")
        a("v_mov_b32 v249, 0")
        srd(a, R4, P_WS, FLAG_BYTES)
        a("buffer_store_dword v249, v250, s[%d:%d], 0 offen sc1" % (R4, R4+3))
        for k in (1, 2):
            a("v_add_u32 v251, %d, v250" % (16384*k))
            a("buffer_store_dword v249, v251, s[%d:%d], 0 offen sc1" % (R4, R4+3))
        a.label(LZ)
    def after_x(a):
        L = a.uid("M_noinit")
        a("s_lshl_b32 s64, s%d, 2" % S_J)
        a("s_add_u32 s64, s64, s%d" % S_WAVE)
        a("s_cmp_lg_u32 s64, 0")
        a("s_cbranch_scc1 %s" % L)
        a("v_mov_b32 v252, 1")
        a("v_mov_b32 v253, 0")
        a("s_mov_b64 exec, 1")
        a("global_store_dword v253, v252, s[%d:%d] sc1" % (P_DBG, P_DBG+1))
        a("s_mov_b64 exec, -1")
        a.label(L)
    def counter_arrive(a, off):
        a("s_add_u32 s76, s%d, %d" % (P_WS, off))
        a("s_addc_u32 s77, s%d, 0" % (P_WS+1))
        a("s_and_b32 s64, s%d, 63" % S_J)
        a("s_lshl_b32 s64, s64, 8")
        arrive(a, 76, 64, 252)
    m0.gen_m0(a, None, dict(st=" sc1", args=m_args, after_x=after_x))
    init_load(a, 254)
    stamp(a, 2)
    mark(a, 10); mark(a, 15, src=96)
    a("s_waitcnt vmcnt(0)")
    a("s_barrier")
    LS = a.uid("M_noarr")
    a("s_cmp_lg_u32 s%d, 0" % S_WAVE)
    a("s_cbranch_scc1 %s" % LS)
    init_check(a, 254)
    counter_arrive(a, P0_OFF)
    a.label(LS)
    m2.gen_m2_setup(a)
    stamp(a, 3)
    if EXP.get("m0only"):
        if PROFILE_ON(): stamp_flush(a)
        a("s_endpgm")
    def before_h(a):
        wait_phase0(a, 20, P0_OFF, pre=int(os.environ.get('HPRE', '56')), slp=int(os.environ.get('HSLP', '16')))
        mark(a, 6)
        mark_cyc(a, 11)
        stamp(a, 12)
        if EXP.get("m0poll"):
            stamp_flush(a)
            a("s_endpgm")
    def u_done(a):
        mark(a, 7)
        a("s_waitcnt vmcnt(0)")
        a("s_barrier")
        L2 = a.uid("M_noarr")
        a("s_cmp_lg_u32 s%d, 0" % S_WAVE)
        a("s_cbranch_scc1 %s" % L2)
        a("s_add_u32 s76, s%d, %d" % (P_WS, FU_OFF))
        a("s_addc_u32 s77, s%d, 0" % (P_WS+1))
        a("s_lshl_b32 s64, s%d, 8" % m1.SDT)
        arrive(a, 76, 64, 20)
        a.label(L2)
    def loader(a):
        L = a.uid("M_noload")
        a("s_lshr_b32 s66, s%d, 3" % S_J)
        a("s_cmp_lt_u32 s66, 30")
        a("s_cbranch_scc1 %s" % L)
        a("s_sub_u32 s66, s66, 30")
        a("s_lshl_b32 s66, s66, 3")
        a("s_and_b32 s67, s%d, 7" % S_J)
        a("s_add_u32 s66, s66, s67")
        a("s_lshl_b32 s66, s66, 2")
        a("s_add_u32 s66, s66, s%d" % S_WAVE)
        a("v_and_b32 v13, 63, v0")
        a("v_lshlrev_b32 v13, 7, v13")
        a("s_mul_i32 s67, s66, %d" % (768*128))
        for (ptr, size) in ((P_W1, S*F*2), (P_W2, F*S*2)):
            srd(a, R4, ptr, size)
            for k in range(12):
                a("s_add_u32 s68, s67, %d" % (k*8192))
                a("buffer_load_dword v255, v13, s[%d:%d], s68 offen" % (R4, R4+3))
        srd(a, R4, P_WO, D*D*2)
        a("s_mul_i32 s67, s66, %d" % (128*128))
        for k in range(2):
            a("s_add_u32 s68, s67, %d" % (k*8192))
            a("buffer_load_dword v255, v13, s[%d:%d], s68 offen" % (R4, R4+3))
        a("s_waitcnt vmcnt(0)")
        a.label(L)
    def touch_w2(a):
        if not EXP.get("tw2"): return 0
        a("s_lshr_b32 s66, s%d, 3" % S_J)
        a("s_mul_hi_u32 s67, s66, 0x24924925")
        a("s_mul_i32 s68, s67, 7")
        a("s_sub_u32 s68, s66, s68")
        a("s_lshl_b32 s67, s67, 3")
        a("s_and_b32 s69, s%d, 7" % S_J)
        a("s_add_u32 s67, s67, s69")
        a("s_mul_i32 s68, s68, 220")
        a("s_mul_i32 s69, s%d, 55" % S_WAVE)
        a("s_add_u32 s68, s68, s69")
        a("v_add_u32 v13, s68, v1")
        a("v_lshlrev_b32 v13, 12, v13")
        a("s_lshl_b32 s67, s67, 7")
        srd(a, R4, P_W2, F*S*2)
        a("s_mov_b32 exec_hi, 0x7fffff")
        a("buffer_load_dword v255, v13, s[%d:%d], s67 offen" % (R4, R4+3))
        a("s_mov_b64 exec, -1")
        a("s_mul_i32 s66, s%d, 27" % S_J)
        a("v_add_u32 v13, s66, v1")
        a("v_lshlrev_b32 v13, 7, v13")
        srd(a, R4, P_WO, D*D*2)
        a("s_mov_b32 exec_hi, 0")
        a("s_mov_b32 exec_lo, 0x7ffffff")
        a("buffer_load_dword v255, v13, s[%d:%d], 0 offen" % (R4, R4+3))
        a("s_mov_b64 exec, -1")
        return 2
    if EXP.get("loader"): loader(a)
    m1.gen_m1(a, dict(before_h=before_h, u_done=u_done, after_loop=touch_w2, st=" sc1", ld=" sc1"))
    a("s_barrier")
    def before_u(a):
        a("s_mul_i32 s76, s%d, 96" % m2.SDG)
        a("s_lshr_b32 s77, s76, 6")
        a("s_add_u32 s76, s76, 95")
        a("s_lshr_b32 s76, s76, 6")
        a("s_min_u32 s76, s76, 9")
        a("v_and_b32 v112, 1, v0")
        a("v_mov_b32 v113, s77")
        a("v_mov_b32 v114, s76")
        a("v_cmp_eq_u32 vcc, 0, v112")
        a("s_nop 1")
        a("v_cndmask_b32 v112, v114, v113, vcc")
        a("v_lshlrev_b32 v112, 8, v112")
        a("s_add_u32 s76, s%d, %d" % (P_WS, FU_OFF))
        a("s_addc_u32 s77, s%d, 0" % (P_WS+1))
        poll_loop(a, lambda a: a("global_load_dword v113, v112, s[76:77] sc1"),
                  lambda a: a("v_cmp_ne_u32 vcc, 24, v113"), 112)
    def before_o(a):
        mark(a, 8)
        a("s_lshl_b32 s76, s%d, 8" % m2.SSG)
        a("v_mov_b32 v112, s76")
        a("s_add_u32 s76, s%d, %d" % (P_WS, FO_OFF))
        a("s_addc_u32 s77, s%d, 0" % (P_WS+1))
        poll_loop(a, lambda a: a("global_load_dword v113, v112, s[76:77] sc1"),
                  lambda a: a("v_cmp_ne_u32 vcc, 8, v113"), 112)
        stamp(a, 11)
    m2.gen_m2(a, dict(before_u=before_u, before_o=before_o, ld=" sc1", ost=(" sc1" if EXP.get("outsc1") else "")), setup_done=True)
    if common.DBGT:
        a("s_waitcnt vmcnt(0)")
        mark(a, 9)
        mark_cyc(a, 12)
        mark_flush(a, 293, [6, 7, 8, 9, 10, 11, 12, 15])
    if common.PROFILE:
        a("s_waitcnt vmcnt(0)")
        stamp(a, 14); stamp_rt(a, 13)
        stamp_flush(a)
    a.label(LE)
    a("s_endpgm")
    a.raw(KD.format(name=name, nv=256))
    return [(name, 512, 256, 81920)], a.text()

def header(launches):
    ref = open("parallel_sum__grouped_kv_mqa__mixer_token_mlp__prompt.s.ref").read().split("\n")
    out = []
    for l in ref:
        if l.startswith("; @launch"): break
        if l.startswith("; Override launch"): continue
        if l.startswith("; grid=ceil"): continue
        out.append(l)
    for (n, g, b, lds) in launches:
        if len(launches) == 1 and n.startswith("parallel"):
            out.append("; @launch grid=(%d,1,1) block=(%d,1,1) lds=%d" % (g, b, lds))
        else:
            out.append("; @launch kernel=%s grid=(%d,1,1) block=(%d,1,1) lds=%d" % (n, g, b, lds))
    out.append('.amdgcn_target "amdgcn-amd-amdhsa--gfx950"')
    out.append(".text")
    return "\n".join(out) + "\n"

if __name__ == "__main__":
    mode = sys.argv[1]
    outp = sys.argv[2]
    if mode.startswith("split"):
        parts = mode.split(":")[1].split(",") if ":" in mode else ["k1","k2","k3"]
        launches, text = build_split(parts)
    elif mode == "fused":
        launches, text = build_fused()
    open(outp, "w").write(header(launches) + text)
    print(launches, len(text))
```

```python
from common import *
import common
PROFILE = common.PROFILE
EXP = common.EXP
import math, struct
import os as _os
def f2u(x): return struct.unpack("<I", struct.pack("<f", x))[0]
KVS0, KVS1 = 0, 32768
ST0, ST_STR = 0, 18432
EXS = 79872; EXC = EXS + 512; EXF = EXC + 512
STG, SHG, SHEAD, STTA, STTB, STL = 35, 36, 37, 38, 39, 5
SONES = 6
SKC, SDST, SDEL, SSTG, ST1, ST2, ST3 = 60, 61, 62, 63, 64, 65, 66
SC, SKVD, SKVO, SPASS = 67, 68, 69, 70
SWN0, SWN1, SWN2 = 71, 72, 73
SXO, SWO, SXD, SXW = 74, 75, 76, 77
SD2, SWO2 = 98, 99
QDUMMY = 77824
RX, RW, RKV, RO = R0, R1, R2, R3
VL, VH, VT = 1, 2, 3
Q1 = (80, 88); Q2 = (84, 86)
SB = (96, 112); OB = (128, 144); CB = (160, 176)
TB = 192; PB = 200
K1 = (208, 212); K2 = (216, 220); V1 = (224, 228); V2 = (232, 236)
KAC, KAN, K2C, K2N, VAC, VAN = 240, 241, 242, 243, 244, 245
VKVD, VOST = 246, 247

def kv_dma(a, sdst, soff, ld=''):
    g = []
    g.append(["s_mul_i32 s%d, s%d, 6144" % (ST1, S_WAVE), "s_add_u32 m0, s%d, s%d" % (sdst, ST1), "s_add_u32 s%d, s%d, 4096" % (ST2, soff),
              "buffer_load_dwordx4 v%d, s[%d:%d], s%d offen%s lds" % (VKVD, RKV, RKV+3, soff, ld)])
    for k in (1, 2, 3):
        g.append(["buffer_load_dwordx4 v%d, s[%d:%d], s%d offen offset:%d%s lds" % (VKVD, RKV, RKV+3, soff, 1024*k, ld)])
    g.append(["s_add_u32 m0, m0, 4096", "s_nop 0", "buffer_load_dwordx4 v%d, s[%d:%d], s%d offen%s lds" % (VKVD, RKV, RKV+3, ST2, ld)])
    g.append(["buffer_load_dwordx4 v%d, s[%d:%d], s%d offen offset:1024%s lds" % (VKVD, RKV, RKV+3, ST2, ld)])
    return g

def qproj_dma_prep(a):
    a("s_lshl_b32 s%d, s%d, 7" % (SXO, ST3))
    a("s_cmp_lt_u32 s%d, 10" % ST3)
    a("s_cselect_b32 s%d, s%d, 0x40000000" % (SXO, SXO))
    a("s_mul_i32 s%d, s%d, 81920" % (SWO, ST3))
    a("s_add_u32 s%d, s%d, s%d" % (SXD, SDST, SXW))
    a("s_cmp_lt_u32 s%d, 2" % S_WAVE)
    a("s_cselect_b32 s%d, s%d, 0" % (SD2, SDST))
    a("s_cselect_b32 s%d, s%d, 0x40000000" % (SWO2, SWO))
def qproj_dma_pieces():
    g = []
    g.append(["s_mov_b32 m0, s%d" % SXD, "s_add_u32 s%d, s%d, 64" % (ST1, SXO),
              "buffer_load_dwordx4 v4, s[%d:%d], s%d offen lds" % (RX, RX+3, SXO)])
    g.append(["s_add_u32 m0, s%d, 4096" % SXD, "s_nop 0",
              "buffer_load_dwordx4 v4, s[%d:%d], s%d offen lds" % (RX, RX+3, ST1)])
    for m, sn in enumerate((SWN0, SWN1, SWN2)):
        g.append(["s_add_u32 m0, s%d, s%d" % (SDST if m < 2 else SD2, sn), "s_nop 0",
                  "buffer_load_dwordx4 v%d, s[%d:%d], s%d offen lds" % (5+m, RW, RW+3, SWO if m < 2 else SWO2)])
    return g

def dq_of_mq(a, vl, dst, t1, t2):
    a("v_and_b32 v%d, 3, v%d" % (t1, vl))
    a("v_bfe_u32 v%d, v%d, 4, 1" % (t2, vl))
    a("v_lshl_add_u32 v%d, v%d, 2, v%d" % (t1, t2, t1))
    a("v_lshrrev_b32 v%d, 1, v%d" % (t2, t1))
    a("v_xor_b32 v%d, v%d, v%d" % (t2, t2, t1))
    a("v_and_b32 v%d, 1, v%d" % (t2, t2))
    a("v_mul_u32_u24 v%d, 3, v%d" % (t2, t2))
    a("v_xor_b32 v%d, v%d, v%d" % (t2, t2, t1))
    a("v_cmp_gt_u32 vcc, 4, v%d" % t1)
    a("v_mov_b32 v%d, 4" % dst)
    a("s_nop 0")
    a("v_cndmask_b32 v%d, v%d, v%d, vcc" % (dst, dst, t2))

def gen_qproj(a, hooks):
    a("; ---------- q projection ----------")
    if EXP.get("early"): a("s_memtime s[50:51]")
    a("v_lshrrev_b32 v20, 2, v%d" % VL)
    a("s_lshl_b32 s%d, s%d, 6" % (ST1, STG))
    a("s_lshl_b32 s%d, s%d, 4" % (ST2, S_WAVE))
    a("s_add_u32 s%d, s%d, s%d" % (ST1, ST1, ST2))
    a("v_add_u32 v20, s%d, v20" % ST1)
    a("s_movk_i32 s%d, 1280" % ST3)
    a("v_mul_lo_u32 v20, v20, s%d" % ST3)
    a("v_and_b32 v21, 3, v%d" % VL)
    a("v_bfe_u32 v22, v%d, 4, 2" % VL)
    a("v_xor_b32 v21, v21, v22")
    a("v_lshl_add_u32 v4, v21, 4, v20")
    if EXP.get("early"): a("s_memtime s[52:53]")
    a("s_add_u32 s%d, s%d, 4" % (SWN1, S_WAVE))
    a("s_add_u32 s%d, s%d, 8" % (SWN2, S_WAVE))
    a("s_cmp_lt_u32 s%d, 2" % S_WAVE)
    a("s_cselect_b32 s%d, s%d, s%d" % (SWN2, SWN2, SWN1))
    a("s_mov_b32 s%d, s%d" % (SWN0, S_WAVE))
    a("s_mul_i32 s%d, s%d, 160" % (ST2, SHG))
    for m, sn in enumerate((SWN0, SWN1, SWN2)):
        a("s_lshl_b32 s%d, s%d, 6" % (ST1, sn))
        a("v_add_u32 v20, s%d, v%d" % (ST1, VL))
        a("v_mul_u32_u24 v21, 6554, v20")
        a("v_lshrrev_b32 v21, 16, v21")
        a("v_mul_u32_u24 v22, 10, v21")
        a("v_sub_u32 v22, v20, v22")
        a("v_mul_lo_u32 v21, v21, s%d" % ST3)
        a("v_lshl_add_u32 v21, v22, 4, v21")
        a("v_add_u32 v%d, s%d, v21" % (5+m, ST2))
        a("s_lshl_b32 s%d, s%d, 10" % (sn, sn))
        a("s_add_u32 s%d, s%d, 8192" % (sn, sn))
        if m == 2:
            a("s_cmp_lt_u32 s%d, 2" % S_WAVE)
            a("s_cselect_b32 s%d, s%d, %d" % (sn, sn, QDUMMY))
    if EXP.get("early"): a("s_memtime s[54:55]")
    a("s_waitcnt lgkmcnt(0)")
    stamp_init(a); stamp_rt(a, 0); stamp(a, 1)
    if EXP.get("early"):
        a("s_sub_u32 s91, s81, s48"); a("s_sub_u32 s92, s81, s50"); a("s_sub_u32 s93, s81, s52"); a("s_sub_u32 s94, s81, s54")
    srd(a, RKV, P_WS, KV_SIZE, KV_OFF)
    srd(a, RX, P_X, S*D*2)
    srd(a, RW, P_WQ, D*D*2)
    a("s_lshl_b32 s%d, s%d, 10" % (SXW, S_WAVE))
    for kc in range(2):
        a("s_mov_b32 s%d, %d" % (ST3, kc))
        a("s_mov_b32 s%d, %d" % (SDST, ST0 + kc*ST_STR))
        qproj_dma_prep(a)
        for g in qproj_dma_pieces():
            for x in g: a(x)
    if not EXP.get("notouch"):
        a("s_lshr_b32 s%d, s2, 3" % ST1)
        a("s_mul_i32 s%d, s%d, 20" % (ST1, ST1))
        a("s_mul_i32 s%d, s%d, 5" % (ST2, S_WAVE))
        a("s_add_u32 s%d, s%d, s%d" % (ST1, ST1, ST2))
        a("v_mul_u32_u24 v20, 6554, v%d" % VL)
        a("v_lshrrev_b32 v20, 16, v20")
        a("v_mul_u32_u24 v21, 10, v20")
        a("v_sub_u32 v21, v%d, v21" % VL)
        a("v_lshlrev_b32 v21, 7, v21")
        a("v_add_u32 v22, s%d, v20" % ST1)
        a("v_mul_u32_u24 v22, 1280, v22")
        a("v_add_u32 v22, v22, v21")
        a("s_mov_b32 exec_hi, 0x3ffff")
        a("buffer_load_dword v255, v22, s[%d:%d], 0 offen" % (RW, RW+3))
        a("s_lshl_b32 s%d, s%d, 6" % (ST1, STG))
        a("s_lshl_b32 s%d, s%d, 3" % (ST2, SHG))
        a("s_add_u32 s%d, s%d, s%d" % (ST1, ST1, ST2))
        a("s_lshl_b32 s%d, s%d, 1" % (ST2, S_WAVE))
        a("s_add_u32 s%d, s%d, s%d" % (ST1, ST1, ST2))
        a("s_mov_b32 exec_hi, 0")
        a("s_mov_b32 exec_lo, 0xfffff")
        a("v_add_u32 v22, s%d, v20" % ST1)
        a("v_mul_u32_u24 v22, 1280, v22")
        a("v_add_u32 v22, v22, v21")
        a("buffer_load_dword v255, v22, s[%d:%d], 0 offen" % (RX, RX+3))
        a("s_mov_b64 exec, -1")
    a("s_setprio %d" % int(_os.environ.get("APRIO0B", "0")))
    a("v_lshrrev_b32 v20, 4, v%d" % VT)
    a("s_lshl_b32 s%d, s%d, 1" % (ST1, STL))
    a("v_add_u32 v20, s%d, v20" % ST1)
    a("v_lshlrev_b32 v20, 10, v20")
    a("v_and_b32 v21, 15, v%d" % VT)
    a("v_lshl_add_u32 v20, v21, 6, v20")
    a("v_bfe_u32 v21, v%d, 2, 2" % VT)
    a("v_xor_b32 v21, v21, v%d" % VH)
    a("v_lshl_add_u32 v20, v21, 4, v20")
    a("v_add_u32 v8, %d, v20" % ST0)
    a("v_xor_b32 v9, 32, v8")
    a("s_cmp_eq_u32 s%d, 0" % STL)
    a("s_movk_i32 s%d, -2048" % ST2)
    a("s_cselect_b32 s%d, 2048, s%d" % (ST1, ST2))
    a("v_add_u32 v10, s%d, v8" % ST1)
    a("v_add_u32 v11, s%d, v9" % ST1)
    dq_of_mq(a, VL, 23, 21, 22)
    a("v_bfe_u32 v20, v%d, 2, 2" % VL)
    a("v_lshl_add_u32 v20, v%d, 3, v20" % VH)
    a("v_mul_u32_u24 v20, 160, v20")
    a("v_lshl_add_u32 v20, v23, 3, v20")
    a("s_mul_i32 s%d, s%d, 40" % (ST1, S_WAVE))
    a("s_add_u32 s%d, s%d, %d" % (ST1, ST1, ST0 + 8192))
    a("v_add_u32 v12, s%d, v20" % ST1)
    for r in range(16, 20): a("v_mov_b32 v%d, 0x3f803f80" % r)
    for r in list(range(48, 80)) + list(range(96, 112)): a("v_mov_b32 v%d, 0" % r)
    a("s_mov_b32 s%d, 0x3f803f80" % SONES)
    a("s_mov_b32 s%d, 0" % SKC)
    a("s_mov_b32 s%d, 0" % SSTG)
    kv_addr_init(a)
    for r in range(CB[0], CB[0]+32): a("v_mov_b32 v%d, 0" % r)
    FS = (20, 32, 208, 220)
    LT = a.uid("QP_top")
    stamp(a, 2)
    stamp(a, 3)
    ntouch = 0 if EXP.get("notouch") else 2
    def reads(ks, b):
        if EXP.get("qnoread"): return
        seg, k1 = ks >> 1, ks & 1
        a("ds_read_b64_tr_b16 v[%d:%d], v12 offset:%d" % (b, b+1, ks*2560))
        a("ds_read_b64_tr_b16 v[%d:%d], v12 offset:%d" % (b+2, b+3, ks*2560+640))
        a("ds_read_b128 v[%d:%d], v%d offset:%d" % (b+4, b+7, 8+k1, seg*4096))
        a("ds_read_b128 v[%d:%d], v%d offset:%d" % (b+8, b+11, 10+k1, seg*4096))
    def q_iter():
        a("s_add_u32 s%d, s%d, 2" % (ST3, SKC))
        a("s_add_u32 s%d, s%d, 2" % (SDST, SSTG))
        a("s_and_b32 s%d, s%d, 3" % (SDST, SDST))
        a("s_mul_i32 s%d, s%d, %d" % (SDST, SDST, ST_STR))
        qproj_dma_prep(a)
        pieces = qproj_dma_pieces()
        if EXP.get("qnodma"): pieces = [[] for _ in pieces]
        for ks in range(4):
            b = FS[ks]
            if ks == 2:
                a("s_waitcnt vmcnt(5)")
                a("s_barrier")
                a("s_cmp_eq_u32 s%d, 3" % SSTG)
                a("s_mov_b32 s%d, %d" % (SDEL, ST_STR))
                a("s_cselect_b32 s%d, %d, s%d" % (SDEL, -3*ST_STR, SDEL))
                for r in range(8, 13): a("v_add_u32 v%d, s%d, v%d" % (r, SDEL, r))
                a("s_add_u32 s%d, s%d, 1" % (SSTG, SSTG))
                a("s_and_b32 s%d, s%d, 3" % (SSTG, SSTG))
                a("s_add_u32 s%d, s%d, 1" % (SKC, SKC))
            reads((ks+2) & 3, FS[(ks+2) & 3])
            a("s_waitcnt lgkmcnt(8)")
            pat = {0: [0, 1, None], 1: [2, 3, 4], 2: [None]*3, 3: [None]*3}[ks]
            ms = [mfma(48, b, b+4, 48), mfma(64, b, b+8, 64), mfma(96, b, 16, 96)]
            for i in range(3):
                if not EXP.get("qnomfma") and not (i == 2 and EXP.get("qnocs")): a(ms[i])
                if pat[i] is not None:
                    for x in pieces[pat[i]]: a(x)
    a("s_waitcnt vmcnt(%d)" % (5 + ntouch))
    a("s_barrier")
    reads(0, FS[0]); reads(1, FS[1])
    a.label(LT)
    q_iter(); q_iter()
    a("s_cmp_lt_u32 s%d, 10" % SKC)
    a("s_cbranch_scc1 %s" % LT)
    if "q_tail" in hooks: hooks["q_tail"](a)
    a("s_waitcnt vmcnt(0) lgkmcnt(0)")
    stamp(a, 4)
    a("s_barrier")
    if "after_qproj_barrier" in hooks: hooks["after_qproj_barrier"](a)
    a("s_waitcnt vmcnt(12)")
    c = f2u(math.log2(math.e) / math.sqrt(20.0))
    a("v_mul_f32 v15, 0x%x, v15" % c)
    a("v_mul_f32 v19, 0x%x, v19" % c)
    for t, (dacc, mean, rc) in enumerate(((48, 14, 15), (64, 18, 19))):
        for r in range(12):
            a("v_fma_f32 v%d, -v%d, v%d, v%d" % (dacc+r, mean, 96+r, dacc+r))
        for r in range(12):
            a("v_mul_f32 v%d, v%d, v%d" % (dacc+r, rc, dacc+r))
        for i in range(4):
            a("v_cvt_pk_bf16_f32 v%d, v%d, v%d" % (Q1[t]+i, dacc+2*i, dacc+2*i+1))
        for i in range(2):
            a("v_cvt_pk_bf16_f32 v%d, v%d, v%d" % (Q2[t]+i, dacc+8+2*i, dacc+9+2*i))
    a("v_cmp_gt_u32 vcc, 32, v%d" % VL)
    a("s_nop 1")
    for t in range(2):
        for i in range(2):
            a("v_cndmask_b32 v%d, 0, v%d, vcc" % (Q2[t]+i, Q2[t]+i))

def kv_addr_init(a):
    a("v_lshlrev_b32 v%d, 4, v%d" % (KAC, VL))
    a("v_lshlrev_b32 v%d, 3, v%d" % (K2C, VT))
    a("v_add_u32 v%d, 8192, v%d" % (K2C, K2C))
    a("v_min_u32 v20, 21, v%d" % VT)
    a("v_lshlrev_b32 v20, 4, v20")
    a("v_mul_u32_u24 v21, 384, v%d" % VH)
    a("v_add_u32 v20, v20, v21")
    a("v_add_u32 v%d, 10240, v20" % VAC)
    for c, n in ((KAC, KAN), (K2C, K2N), (VAC, VAN)):
        a("v_add_u32 v%d, %d, v%d" % (n, KVS1, c))
    a("s_mul_i32 s%d, s%d, 6144" % (ST1, S_WAVE))
    a("v_lshlrev_b32 v%d, 4, v%d" % (VKVD, VL))
    a("v_add_u32 v%d, s%d, v%d" % (VKVD, ST1, VKVD))

def k2reg(kt): return K2[(kt >> 1) & 1] + 2*(kt & 1)

def gen_main(a, hooks):
    a("; ---------- attention main ----------")
    LPASS = a.uid("AT_pass"); LLOOP = a.uid("AT_loop")
    a.label(LPASS)
    for r in list(range(OB[0], OB[0]+32)) + list(range(TB, TB+8)) + list(range(PB, PB+8)) + list(range(V2[1], V2[1]+4)):
        a("v_mov_b32 v%d, 0" % r)
    a("s_waitcnt vmcnt(6)")
    a("s_barrier")
    a("ds_read_b128 v[%d:%d], v%d" % (K1[0], K1[0]+3, KAC))
    a("ds_read2_b64 v[%d:%d], v%d offset0:0 offset1:32" % (K2[0], K2[0]+3, K2C))
    a("ds_read_b128 v[%d:%d], v%d" % (V1[0], V1[0]+3, VAC))
    a("ds_read_b128 v[%d:%d], v%d offset:768" % (V2[0], V2[0]+3, VAC))
    a("s_waitcnt lgkmcnt(2)")
    a(mfma(SB[0], K1[0], Q1[0], CB[0]))
    a(mfma8(SB[0], k2reg(0), Q2[0], SB[0]))
    a("s_mov_b32 s%d, 0" % SC)
    a("s_waitcnt lgkmcnt(0)")
    stamp(a, 5)
    if common.DBGT:
        a("s_mov_b32 s93, 0"); a("s_mov_b32 s94, 0")
    mark(a, 4)
    a.nop(16)
    dmag = kv_dma(a, SKVD, SKVO, hooks.get('ld', ''))
    a.label(LLOOP)
    for n in range(16):
        kt, t = n >> 1, n & 1
        n1 = n + 1; kt1, t1 = n1 >> 1, n1 & 1
        tp = (n - 1) & 1; ktp = (n - 1) >> 1
        ms = [mfma(SB[t1], K1[kt1 & 1], Q1[t1], CB[t1]),
              mfma(OB[tp], V2[ktp & 1], PB+4, OB[tp]),
              mfma8(SB[t1], k2reg(kt1 & 7), Q2[t1], SB[t1]),
              mfma(OB[t], V1[kt & 1], PB, OB[t])]
        for q in range(4):
            a(ms[q])
            extra = []
            nk = kt + 1
            if t == 0 and q == 0:
                extra.append("ds_read_b128 v[%d:%d], v%d offset:%d" % (K1[nk&1], K1[nk&1]+3, KAC if nk < 8 else KAN, (nk & 7)*1024))
            if t == 0 and q == 2:
                extra.append("ds_read_b128 v[%d:%d], v%d offset:%d" % (V1[nk&1], V1[nk&1]+3, VAC if nk < 8 else VAN, (nk & 7)*1536))
            if t == 1 and q == 0:
                extra.append("ds_read_b128 v[%d:%d], v%d offset:%d" % (V2[nk&1], V2[nk&1]+3, VAC if nk < 8 else VAN, (nk & 7)*1536 + 768))
            k2pos = (t == 1 and q == 2 and kt % 2 == 0 and kt != 6) or (n == 14 and q == 1)
            if k2pos:
                pk = (kt + 2) if n != 14 else 8
                b = K2[(pk >> 1) & 1]
                p = (pk & 7) >> 1
                extra.append("ds_read2_b64 v[%d:%d], v%d offset0:%d offset1:%d" % (b, b+3, K2C if pk < 8 else K2N, p*64, p*64+32))
            if q == 3:
                if n == 13:
                    if common.DBGT:
                        extra += ["s_memtime s[78:79]", "s_waitcnt lgkmcnt(0)", "s_mov_b32 s97, s78",
                                  "s_waitcnt vmcnt(0)", "s_memtime s[78:79]", "s_waitcnt lgkmcnt(0)", "s_sub_u32 s97, s78, s97", "s_add_u32 s93, s93, s97", "s_mov_b32 s97, s78",
                                  "s_barrier", "s_memtime s[78:79]", "s_waitcnt lgkmcnt(0)", "s_sub_u32 s97, s78, s97", "s_add_u32 s94, s94, s97"]
                    elif PROFILE and not EXP.get("chunkt"):
                        extra += ["s_memtime s[78:79]", "s_waitcnt lgkmcnt(0)", "s_mov_b32 s97, s78",
                                  "s_waitcnt vmcnt(0)", "s_memtime s[78:79]", "s_waitcnt lgkmcnt(0)", "s_sub_u32 s97, s78, s97", "s_add_u32 s91, s91, s97", "s_mov_b32 s97, s78",
                                  "s_barrier", "s_memtime s[78:79]", "s_waitcnt lgkmcnt(0)", "s_sub_u32 s97, s78, s97", "s_add_u32 s92, s92, s97"]
                    else:
                        extra += ["s_waitcnt vmcnt(0) lgkmcnt(0)", "s_barrier"]
                else: extra.append("s_waitcnt lgkmcnt(1)")
            di = (n - 14)*4 + q if n >= 14 else -1
            if 1 <= di <= 6 and di != 1 or (n == 14 and q == 0) or False:
                pass
            dma_at = {(14,0): 0, (14,2): 1, (14,3): 2, (15,1): 3, (15,2): 4, (15,3): 5}
            if (n, q) in dma_at:
                extra += dmag[dma_at[(n, q)]]
            if n == 15 and q == 3:
                extra += ["s_xor_b32 s%d, s%d, %d" % (SKVD, SKVD, KVS1), "s_add_u32 s%d, s%d, %d" % (SKVO, SKVO, KV_CHUNK)]
            for x in extra: a(x)
            Tc = TB + 4*(q & 1); Tp = TB + 4*((q+1) & 1)
            pd = PB + (2*q + 6) % 8
            es = ["v_exp_f32 v%d, v%d" % (Tc+e, SB[t]+4*q+e) for e in range(4)]
            cs = ["v_cvt_pk_bf16_f32 v%d, v%d, v%d" % (pd, Tp, Tp+1), "v_cvt_pk_bf16_f32 v%d, v%d, v%d" % (pd+1, Tp+2, Tp+3)]
            for x in (es[0], es[1], cs[0], cs[1], es[2], es[3]): a(x)
    for c, nn in ((KAC, KAN), (K2C, K2N), (VAC, VAN)):
        a("v_xor_b32 v%d, %d, v%d" % (c, KVS1, c))
        a("v_xor_b32 v%d, %d, v%d" % (nn, KVS1, nn))
    if EXP.get("chunkt"):
        a("s_memtime s[78:79]")
        a("s_waitcnt lgkmcnt(0)")
        for k, sl in enumerate((2, 3, 4, 10, 11, 12, 13, 14)):
            a("s_cmp_eq_u32 s%d, %d" % (SC, k))
            a("s_cselect_b32 s%d, s78, s%d" % (80+sl, 80+sl))
    a("s_add_u32 s%d, s%d, 1" % (SC, SC))
    a("s_cmp_lt_u32 s%d, 8" % SC)
    a("s_cbranch_scc1 %s" % LLOOP)
    stamp(a, 6)
    a("v_cvt_pk_bf16_f32 v%d, v%d, v%d" % (PB+6, TB+4, TB+5))
    a("v_cvt_pk_bf16_f32 v%d, v%d, v%d" % (PB+7, TB+6, TB+7))
    a("s_nop 1")
    a(mfma(OB[1], V2[1], PB+4, OB[1]))
    a.nop(18)
    return LPASS

def gen_att(a, hooks=None):
    hooks = hooks or {}
    a("; ================= A-WG =================")
    a("s_setprio %d" % int(_os.environ.get("APRIO0", "3")))
    if EXP.get("early"): a("s_memtime s[48:49]")
    a("s_and_b32 s%d, s2, 7" % STG)
    a("s_lshr_b32 s%d, s2, 3" % ST1)
    a("s_and_b32 s%d, s%d, 7" % (SHG, ST1))
    a("s_lshr_b32 s%d, s%d, 3" % (ST1, ST1))
    a("s_lshl_b32 s%d, s%d, 3" % (ST1, ST1))
    a("s_add_u32 s%d, s%d, s%d" % (STG, STG, ST1))
    wave_lane(a, VL)
    a("v_lshrrev_b32 v%d, 5, v%d" % (VH, VL))
    a("v_and_b32 v%d, 31, v%d" % (VT, VL))
    a("s_nop 2")
    a("s_lshl_b32 s%d, s%d, 2" % (SHEAD, SHG))
    a("s_add_u32 s%d, s%d, s%d" % (SHEAD, SHEAD, S_WAVE))
    a("s_and_b32 s%d, s%d, 1" % (STL, S_WAVE))
    a("s_lshl_b32 s%d, s%d, 1" % (STTA, STG))
    a("s_add_u32 s%d, s%d, 1" % (STTB, STTA))
    a("s_sub_u32 s%d, s%d, s%d" % (STTB, STTB, STL))
    a("s_add_u32 s%d, s%d, s%d" % (STTA, STTA, STL))
    def after_q(a):
        if "wait_kv" in hooks: hooks["wait_kv"](a)
        ld = hooks.get("ld", "")
        srd(a, RO, P_WS, STAT_SIZE, STAT_OFF)
        a("v_lshlrev_b32 v20, 3, v%d" % VT)
        a("s_lshl_b32 s%d, s%d, 8" % (ST1, STTA))
        a("s_lshl_b32 s%d, s%d, 8" % (ST2, STTB))
        a("buffer_load_dwordx2 v[14:15], v20, s[%d:%d], s%d offen%s" % (RO, RO+3, ST1, ld))
        a("buffer_load_dwordx2 v[18:19], v20, s[%d:%d], s%d offen%s" % (RO, RO+3, ST2, ld))
        for (dst, off) in ((KVS0, 0), (KVS1, KV_CHUNK)):
            a("s_mov_b32 s%d, %d" % (SKVD, dst))
            a("s_mov_b32 s%d, %d" % (SKVO, off))
            for g in kv_dma(a, SKVD, SKVO, ld):
                for x in g: a(x)
        a("s_mov_b32 s%d, %d" % (SKVD, KVS0))
        a("s_mov_b32 s%d, %d" % (SKVO, 2*KV_CHUNK))
    h2 = dict(hooks); h2["after_qproj_barrier"] = after_q
    gen_qproj(a, h2)
    a("s_mov_b32 s%d, 0" % SPASS)
    a("s_setprio %d" % int(_os.environ.get("APRIO1", "0")))
    LPASS = gen_main(a, hooks)
    LOK = a.uid("AT_ok"); LMAXC = a.uid("AT_mc"); LMAXT = a.uid("AT_mt"); LNC = a.uid("AT_nochk")
    OL = 57344
    for t in range(2):
        l = 20 + t
        a("v_mov_b32 v22, v%d" % (OB[t]+8))
        a("v_mov_b32 v%d, v%d" % (l, OB[t]+8))
        a("s_nop 1")
        a("v_permlane32_swap_b32 v22, v%d" % l)
    a("s_mov_b32 s%d, 0" % ST1)
    a("s_cmp_lg_u32 s%d, 0" % SPASS)
    a("s_cbranch_scc1 %s" % LNC)
    a("v_mov_b32 v24, 0")
    a("v_mov_b32 v25, 0")
    a("v_mov_b32 v26, 0")
    for t in range(2):
        if EXP.get("nopkfma"):
            for r in range(12): a("v_fma_f32 v24, v%d, 0, v24" % (OB[t]+r))
            continue
        for r in range(0, 12, 2):
            a("v_pk_fma_f32 v[24:25], v[%d:%d], v[26:27], v[24:25] op_sel_hi:[1,0,1]" % (OB[t]+r, OB[t]+r+1))
    a("v_min_f32 v23, v20, v21")
    a("v_max_f32 v22, v20, v21")
    a("v_add_f32 v24, v24, v25")
    a("v_add_f32 v24, v24, v22")
    a("v_cmp_nle_f32 vcc, 0x21800000, v23")
    a("s_mov_b32 s%d, 0x71800000" % ST2)
    a("v_cmp_nge_f32 s[74:75], s%d, v24" % ST2)
    a("s_nop 1")
    a("s_or_b64 vcc, vcc, s[74:75]")
    a("s_cmp_lg_u64 vcc, 0")
    a("s_cselect_b32 s%d, 1, 0" % ST1)
    a.label(LNC)
    a("v_rcp_f32 v22, v20")
    a("v_rcp_f32 v23, v21")
    a("v_mov_b32 v24, s%d" % ST1)
    a("s_lshl_b32 s%d, s%d, 2" % (ST2, S_WAVE))
    a("s_add_u32 s%d, s%d, %d" % (ST2, ST2, EXF))
    a("v_mov_b32 v25, s%d" % ST2)
    a("ds_write_b32 v25, v24")
    a("v_lshlrev_b32 v26, 3, v%d" % VT)
    a("v_lshl_add_u32 v26, v%d, 8, v26" % VH)
    a("s_mul_i32 s%d, s%d, 1280" % (ST2, S_WAVE))
    a("s_mul_i32 s%d, s%d, 5120" % (ST3, STL))
    a("s_add_u32 s%d, s%d, s%d" % (ST2, ST2, ST3))
    a("s_add_u32 s%d, s%d, %d" % (ST2, ST2, OL))
    a("v_add_u32 v27, s%d, v26" % ST2)
    a("s_mul_i32 s%d, s%d, -10240" % (ST3, STL))
    a("s_add_u32 s%d, s%d, 5120" % (ST3, ST3))
    a("v_add_u32 v28, s%d, v27" % ST3)
    for t in range(2):
        for r in range(12): a("v_mul_f32 v%d, v%d, v%d" % (OB[t]+r, 22+t, OB[t]+r))
        b = 32 + 8*t
        for i in range(6):
            a("v_cvt_pk_bf16_f32 v%d, v%d, v%d" % (b+i, OB[t]+2*i, OB[t]+2*i+1))
        a("ds_write_b64 v%d, v[%d:%d]" % (27+t, b, b+1))
        a("ds_write_b64 v%d, v[%d:%d] offset:512" % (27+t, b+2, b+3))
        a("s_mov_b32 exec_hi, 0")
        a("ds_write_b64 v%d, v[%d:%d] offset:1024" % (27+t, b+4, b+5))
        a("s_mov_b64 exec, -1")
    a("s_waitcnt lgkmcnt(0)")
    a("s_barrier")
    a("v_mov_b32 v23, %d" % EXF)
    a("ds_read_b128 v[48:51], v23")
    a("v_lshlrev_b32 v26, 3, v%d" % VT)
    a("v_lshl_add_u32 v26, v%d, 9, v26" % VH)
    a("v_add_u32 v26, %d, v26" % OL)
    for m in range(3):
        a("s_add_u32 s%d, s%d, %d" % (ST1, S_WAVE, 4*m))
        a("s_cmp_ge_u32 s%d, 5" % ST1)
        a("s_cselect_b32 s%d, 1, 0" % ST2)
        a("s_mul_i32 s%d, s%d, 5" % (ST3, ST2))
        a("s_sub_u32 s%d, s%d, s%d" % (ST3, ST1, ST3))
        a("s_mul_i32 s74, s%d, 5120" % ST2)
        a("s_lshl_b32 s75, s%d, 10" % ST3)
        a("s_add_u32 s74, s74, s75")
        a("v_add_u32 v27, s74, v26")
        a("ds_read2_b64 v[%d:%d], v27 offset0:0 offset1:32" % (32+4*m, 35+4*m))
        a("s_lshl_b32 s74, s%d, 1" % STG)
        a("s_add_u32 s74, s74, s%d" % ST2)
        a("s_mul_i32 s74, s74, 40")
        a("s_mul_i32 s75, s%d, 5" % SHG)
        a("s_add_u32 s74, s74, s75")
        a("s_add_u32 s74, s74, s%d" % ST3)
        a("s_lshl_b32 s%d, s74, 10" % (98+m))
        if m == 2:
            a("s_cmp_lt_u32 s%d, 10" % ST1)
            a("s_cselect_b32 s100, s100, 0x40000000")
    a("s_waitcnt lgkmcnt(0)")
    a("v_or_b32 v48, v48, v49")
    a("v_or3_b32 v48, v48, v50, v51")
    a("s_nop 0")
    a("v_readfirstlane_b32 s%d, v48" % ST1)
    a("s_nop 3")
    a("s_cmp_eq_u32 s%d, 0" % ST1)
    a("s_cbranch_scc1 %s" % LOK)
    a("v_mov_b32 v20, 0xff800000")
    a("v_mov_b32 v21, 0xff800000")
    a("s_mov_b32 s%d, 0" % SC)
    a.label(LMAXC)
    a("s_barrier")
    a("s_mov_b32 s%d, %d" % (SKVD, KVS0))
    a("s_mul_i32 s%d, s%d, %d" % (SKVO, SC, KV_CHUNK))
    for g in kv_dma(a, SKVD, SKVO, hooks.get('ld', '')):
        for x in g: a(x)
    a("s_waitcnt vmcnt(0)")
    a("s_barrier")
    a("v_mov_b32 v22, v%d" % KAC)
    a("v_mov_b32 v23, v%d" % K2C)
    a("s_mov_b32 s%d, 0" % SKC)
    a.label(LMAXT)
    a("ds_read_b128 v[%d:%d], v22" % (K1[0], K1[0]+3))
    a("ds_read_b64 v[%d:%d], v23" % (K2[0], K2[0]+1))
    a("s_waitcnt lgkmcnt(0)")
    for t in range(2):
        a(mfma(SB[t], K1[0], Q1[t], None))
        a(mfma8(SB[t], K2[0], Q2[t], SB[t]))
    a.nop(18)
    for t in range(2):
        for r in range(0, 16, 2):
            a("v_max3_f32 v%d, v%d, v%d, v%d" % (20+t, SB[t]+r, SB[t]+r+1, 20+t))
    a("v_add_u32 v22, 1024, v22")
    a("v_add_u32 v23, 256, v23")
    a("s_add_u32 s%d, s%d, 1" % (SKC, SKC))
    a("s_cmp_lt_u32 s%d, 8" % SKC)
    a("s_cbranch_scc1 %s" % LMAXT)
    a("s_add_u32 s%d, s%d, 1" % (SC, SC))
    a("s_cmp_lt_u32 s%d, 8" % SC)
    a("s_cbranch_scc1 %s" % LMAXC)
    for t in range(2):
        a("v_mov_b32 v22, v%d" % (20+t))
        a("v_mov_b32 v23, v%d" % (20+t))
        a("s_nop 1")
        a("v_permlane32_swap_b32 v22, v23")
        a("s_nop 1")
        a("v_max_f32 v22, v22, v23")
        a("v_sub_f32 v22, 0, v22")
        for r in range(16): a("v_mov_b32 v%d, v22" % (CB[t]+r))
    a("s_barrier")
    a("s_mov_b32 s%d, %d" % (SKVD, KVS0))
    a("s_mov_b32 s%d, 0" % SKVO)
    for g in kv_dma(a, SKVD, SKVO, hooks.get('ld', '')):
        for x in g: a(x)
    a("s_mov_b32 s%d, %d" % (SKVD, KVS1))
    a("s_mov_b32 s%d, %d" % (SKVO, KV_CHUNK))
    for g in kv_dma(a, SKVD, SKVO, hooks.get('ld', '')):
        for x in g: a(x)
    a("s_mov_b32 s%d, %d" % (SKVD, KVS0))
    a("s_mov_b32 s%d, %d" % (SKVO, 2*KV_CHUNK))
    a("s_mov_b32 s%d, 1" % SPASS)
    a("s_branch %s" % LPASS)
    a.label(LOK)
    srd(a, RO, P_WS, OQ_SIZE, OQ_OFF)
    a("v_lshlrev_b32 v%d, 4, v%d" % (VOST, VL))
    st = hooks.get("st", "")
    for m in range(3):
        a("buffer_store_dwordx4 v[%d:%d], v%d, s[%d:%d], s%d offen%s" % (32+4*m, 35+4*m, VOST, RO, RO+3, 98+m, st))
    if "o_done" in hooks: hooks["o_done"](a)
    stamp(a, 7)
    a("s_waitcnt vmcnt(0)") if PROFILE else None
    stamp(a, 8); stamp_rt(a, 9)
    stamp_flush(a)
```
